```python
import torch

def _softmax(x, axis=-1):
    return torch.softmax(x, dim=axis)
def _gelu(x):
    return torch.nn.functional.gelu(x, approximate="tanh")
def _silu(x):
    return torch.nn.functional.silu(x)
def _sigmoid(x):
    return torch.sigmoid(x)
def _layernorm(x, axis=-1, eps=1e-5):
    m = x.mean(dim=axis, keepdim=True)
    v = x.var(dim=axis, keepdim=True, unbiased=False)
    return (x - m) / torch.sqrt(v + eps)
def _scatter_add(tgt, idx, src, axis=0):
    return tgt.clone().index_add_(axis, idx, src)
def _segment_sum(src, seg, n):
    out = torch.zeros((n,) + src.shape[1:], dtype=src.dtype)
    return out.index_add_(0, seg, src)
def _pad(x, pw):
    flat = tuple(v for pair in reversed(pw) for v in pair)
    return torch.nn.functional.pad(x, flat)

kernel_name = 'interleave_layers__ssm_conv_s4__geglu_ffn__prompt'

def setup_inputs():

    _w = (lambda a: (lambda t: t.to(torch.bfloat16) if t.is_floating_point() else t)(torch.as_tensor(a)))
    def _A_setup():
        B, L, D, N = 1, 2048, 512, 128
        A_re = -(lambda _x: torch.exp(torch.as_tensor(_x)))((lambda *s: torch.randn(*s, dtype=torch.bfloat16) * 1.6)(D, N))
        A_im = torch.pi * (lambda *s: torch.randn(*s, dtype=torch.bfloat16) * 0.2)(D, N)
        B_re = (lambda *s: torch.randn(*s, dtype=torch.bfloat16) * 0.2)(D, N)
        B_im = (lambda *s: torch.randn(*s, dtype=torch.bfloat16) * 0.2)(D, N)
        C_re = (lambda *s: torch.randn(*s, dtype=torch.bfloat16) * 0.2)(D, N)
        C_im = (lambda *s: torch.randn(*s, dtype=torch.bfloat16) * 0.2)(D, N)
        log_dt = (lambda *s: torch.randn(*s, dtype=torch.bfloat16) * 0.2)(D) * 0.5 - 4.0
        Dskip = (lambda *s: torch.randn(*s, dtype=torch.bfloat16) * 0.2)(D)
        return {
            "u": _w((lambda *s: torch.randn(*s, dtype=torch.bfloat16) * 0.05)(B, L, D)),
            "A_re": _w(A_re),
            "A_im": _w(A_im),
            "B_re": _w(B_re),
            "B_im": _w(B_im),
            "C_re": _w(C_re),
            "C_im": _w(C_im),
            "log_dt": _w(log_dt),
            "Dskip": _w(Dskip),
        }
    _A_in = _A_setup()

    def _B_setup():
        B, S, D, F = 1, 2048, 512, 1792
        return {
            "x": _w((lambda *s: torch.randn(*s, dtype=torch.bfloat16) * 0.05)(B, S, D)),
            "w_gate": _w((lambda *s: torch.randn(*s, dtype=torch.bfloat16) * 0.05)(D, F)),
            "w_up": _w((lambda *s: torch.randn(*s, dtype=torch.bfloat16) * 0.05)(D, F)),
            "w_down": _w((lambda *s: torch.randn(*s, dtype=torch.bfloat16) * 0.05)(F, D)),
        }
    _B_in = _B_setup()

    return {
        "A_u": _A_in["u"],
        "A_A_re": _A_in["A_re"],
        "A_A_im": _A_in["A_im"],
        "A_B_re": _A_in["B_re"],
        "A_B_im": _A_in["B_im"],
        "A_C_re": _A_in["C_re"],
        "A_C_im": _A_in["C_im"],
        "A_log_dt": _A_in["log_dt"],
        "A_Dskip": _A_in["Dskip"],
        "B_x": _B_in["x"],
        "B_w_gate": _B_in["w_gate"],
        "B_w_up": _B_in["w_up"],
        "B_w_down": _B_in["w_down"],
    }

def reference(A_u, A_A_re, A_A_im, A_B_re, A_B_im, A_C_re, A_C_im, A_log_dt, A_Dskip, B_x, B_w_gate, B_w_up, B_w_down):
    def _A_ref(u, A_re, A_im, B_re, B_im, C_re, C_im, log_dt, Dskip):
        Bsz, L, D = u.shape
        dt = torch.exp(log_dt)[:, None]
        A = A_re + 1j * A_im
        Bc = B_re + 1j * B_im
        Cc = C_re + 1j * C_im
        logdA = dt * A
        dB = dt * Bc
        l = (lambda x, dt: x.to(dt))(torch.arange(L), A_re.dtype)
        P = torch.exp(logdA[:, :, None] * l[None, None, :])
        K = torch.einsum("dn,dnl,dn->dl", Cc, P, dB).real
        L2 = 2 * L
        Kp = _pad(K, ((0, 0), (0, L)))
        up = (lambda x, *d: x.permute(*d))(u, 0, 2, 1)
        up = _pad(up, ((0, 0), (0, 0), (0, L)))
        Kf = (lambda x, axes=(-2,-1): torch.fft.rfft2(x.float(), dim=axes))(Kp[:, None, :], axes=(-2, -1))
        Uf = (lambda x, axes=(-2,-1): torch.fft.rfft2(x.float(), dim=axes))(up[:, :, None, :], axes=(-2, -1))
        Yf = Uf * Kf[None, :, :, :]
        y = (lambda x, s, axes=(-2,-1): torch.fft.irfft2(x, s=s, dim=axes).to(torch.bfloat16))(Yf, (1, L2), axes=(-2, -1))[:, :, 0, :L]
        y = (lambda x, *d: x.permute(*d))(y, 0, 2, 1) + u * Dskip[None, None, :]
        return y

    def _B_ref(x, w_gate, w_up, w_down):
        return (_gelu(x @ w_gate) * (x @ w_up)) @ w_down

    x = A_u
    x = x + _A_ref(_layernorm(x, axis=-1), A_A_re, A_A_im, A_B_re, A_B_im, A_C_re, A_C_im, A_log_dt, A_Dskip)
    x = x + _B_ref(_layernorm(x, axis=-1), B_w_gate, B_w_up, B_w_down)
    x = x + _A_ref(_layernorm(x, axis=-1), A_A_re, A_A_im, A_B_re, A_B_im, A_C_re, A_C_im, A_log_dt, A_Dskip)
    x = x + _B_ref(_layernorm(x, axis=-1), B_w_gate, B_w_up, B_w_down)
    return x
```

```python
from gen import *

L_MB = 64; L_RI = 8192+128
CH0 = 16640
R_SZ = 4608
CSTR = 5136
CHB = 2*R_SZ + 8*CSTR + 512
O_RHI = 0; O_RLO = R_SZ; O_U = 2*R_SZ; O_ZB = 2*R_SZ + 8*CSTR
CONV_LDS = CH0 + 2*CHB

import os
STAMP = os.environ.get("STAMP")
def gen_conv(k):
    e = k.e
    def stamp(i):
        if STAMP:
            e("s_memtime s[%d:%d]", 64+2*i, 65+2*i)
    kernel_header(k, "conva_kernel")
    e("s_mov_b32 s20, 0")
    e("s_branch conv_common")
    kernel_header(k, "convb_kernel")
    e("s_mov_b32 s20, 1")
    k.lab("conv_common")
    e("s_cmp_ge_u32 s2, 256")
    e("s_cbranch_scc1 conv_done")
    stamp(0)
    e("s_load_dwordx2 s[4:5], s[0:1], 0")
    e("s_load_dwordx2 s[6:7], s[0:1], 120")
    e("s_load_dwordx2 s[8:9], s[0:1], 64")
    e("s_waitcnt lgkmcnt(0)")
    k.srd(28, 6, 0x1E00000 if STAMP else WS_USED)
    e("s_lshl_b32 s3, s2, 2")
    e("s_load_dword s21, s[8:9], s3")
    e("s_cmp_eq_u32 s20, 0")
    e("s_mov_b32 s22, 0x%x", WS_ST3)
    e("s_mov_b32 s23, 0x%x", WS_X3T)
    e("s_cmp_eq_u32 s20, 0")
    e("s_cselect_b32 s22, 0x%x, s22", WS_ST1)
    e("s_cselect_b32 s23, 0x%x, s23", WS_X1T)
    e("s_mov_b32 s10, 0x%x", WS_X2T)
    e("s_cselect_b32 s10, 0x%x, s10", WS_X0T)
    e("s_add_u32 s24, s6, s10")
    e("s_addc_u32 s25, s7, 0")
    e("s_mov_b32 s26, 0x200000")
    e("s_mov_b32 s27, 0x00020000")
    e("v_lshrrev_b32 v1, 7, v0")
    e("v_and_b32 v2, 127, v0")
    e("s_lshl_b32 s3, s2, 1")
    e("v_add_u32 v3, s3, v1")
    e("v_lshlrev_b32 v6, 12, v3")
    e("v_lshl_add_u32 v6, v2, 5, v6")
    e("v_add_u32 v6, -16, v6")
    e("buffer_load_dwordx4 v[144:147], v6, s[24:27], 0 offen")
    e("buffer_load_dwordx4 v[148:151], v6, s[24:27], 0 offen offset:16")
    e("buffer_load_dwordx4 v[152:155], v6, s[24:27], 0 offen offset:32")
    e("v_lshlrev_b32 v5, 13, v3")
    e("v_lshl_add_u32 v5, v2, 4, v5")
    e("v_add_u32 v5, 0x%x, v5", WS_K)
    for j in range(4):
        e("s_mov_b32 s40, %d", j*2048)
        e("buffer_load_dwordx4 v[%d:%d], v5, s[28:31], s40 offen", 128+4*j, 131+4*j)
    e("v_lshlrev_b32 v4, 5, v0")
    e("v_add_u32 v4, s22, v4")
    for c in range(8):
        for h in range(2):
            e("s_mov_b32 s40, %d", c*8192 + h*16)
            e("buffer_load_dwordx4 v[%d:%d], v4, s[28:31], s40 offen", 8+8*c+4*h, 11+8*c+4*h)
    stamp(1)
    e("v_mov_b32 v72, 0"); e("v_mov_b32 v73, 0"); e("v_mov_b32 v74, 0"); e("v_mov_b32 v75, 0")
    e("v_mul_u32_u24 v7, %d, v1", CHB)
    e("v_add_u32 v7, %d, v7", CH0)
    e("v_lshl_add_u32 v85, v2, 4, v7")
    e("v_cmp_gt_u32 vcc, 32, v2")
    e("s_and_saveexec_b64 s[42:43], vcc")
    e("ds_write_b128 v85, v[72:75] offset:%d", O_RHI + 4096)
    e("ds_write_b128 v85, v[72:75] offset:%d", O_RLO + 4096)
    e("ds_write_b128 v85, v[72:75] offset:%d", O_ZB)
    e("s_mov_b64 exec, s[42:43]")
    e("s_waitcnt vmcnt(0)")
    for i in range(8):
        m = [8+8*c+i for c in range(8)]
        e("v_add_f32 v80, v%d, v%d", m[0], m[1])
        e("v_add_f32 v81, v%d, v%d", m[2], m[3])
        e("v_add_f32 v82, v%d, v%d", m[4], m[5])
        e("v_add_f32 v83, v%d, v%d", m[6], m[7])
        e("v_add_f32 v80, v80, v81")
        e("v_add_f32 v82, v82, v83")
        e("v_add_f32 v80, v80, v82")
        e("v_mul_f32 v%d, 0.125, v80", 72+i)
        e("v_sub_f32 v81, v%d, v%d", m[0], 72+i)
        e("v_mul_f32 v%d, v81, v81", 88+i)
        for c in range(1,8):
            e("v_sub_f32 v81, v%d, v%d", m[c], 72+i)
            e("v_fma_f32 v%d, v81, v81, v%d", 88+i, 88+i)
    e("ds_write_b128 v85, v[128:131] offset:%d", O_RHI)
    e("ds_write_b128 v85, v[132:135] offset:%d", O_RHI + 2048)
    e("ds_write_b128 v85, v[136:139] offset:%d", O_RLO)
    e("ds_write_b128 v85, v[140:143] offset:%d", O_RLO + 2048)
    for c in range(8):
        for h in range(2):
            e("s_mov_b32 s40, %d", 0x10000 + c*8192 + h*16)
            e("buffer_load_dwordx4 v[%d:%d], v4, s[28:31], s40 offen", 8+8*c+4*h, 11+8*c+4*h)
    for j in range(12):
        e("v_lshlrev_b32 v%d, 16, v%d", 160+2*j, 144+j)
        e("v_and_b32 v%d, 0xffff0000, v%d", 161+2*j, 144+j)
    e("s_waitcnt vmcnt(0)")
    for i in range(8):
        q = [8+8*c+i for c in range(8)]
        e("v_add_f32 v80, v%d, v%d", q[0], q[1])
        e("v_add_f32 v81, v%d, v%d", q[2], q[3])
        e("v_add_f32 v82, v%d, v%d", q[4], q[5])
        e("v_add_f32 v83, v%d, v%d", q[6], q[7])
        e("v_add_f32 v80, v80, v81")
        e("v_add_f32 v82, v82, v83")
        e("v_add_f32 v80, v80, v82")
        e("v_mov_b32 v81, 0x42800000")
        e("v_fma_f32 v80, v%d, v81, v80", 88+i)
        e("v_mul_f32 v80, 0x3b000000, v80")
        e("v_cvt_pk_bf16_f32 v82, v%d, v80", 72+i)
        e("v_lshlrev_b32 v%d, 16, v82", 96+i)
        e("v_and_b32 v80, 0xffff0000, v82")
        e("v_add_f32 v80, 0x3727c5ac, v80")
        e("v_cvt_pk_bf16_f32 v80, v80, v80")
        e("v_lshlrev_b32 v80, 16, v80")
        e("v_sqrt_f32 v80, v80")
        e("s_nop 0")
        e("v_cvt_pk_bf16_f32 v80, v80, v80")
        e("v_lshlrev_b32 v80, 16, v80")
        e("v_rcp_f32 v%d, v80", 104+i)
    e("v_lshlrev_b32 v12, 5, v0")
    e("s_nop 0")
    e("ds_write_b128 v12, v[96:99] offset:%d", L_MB)
    e("ds_write_b128 v12, v[100:103] offset:%d", L_MB+16)
    e("ds_write_b128 v12, v[104:107] offset:%d", L_RI)
    e("ds_write_b128 v12, v[108:111] offset:%d", L_RI+16)
    e("s_waitcnt lgkmcnt(0)")
    e("s_barrier")
    stamp(2)
    e("v_lshlrev_b32 v12, 6, v2")
    for j in range(6):
        e("ds_read_b128 v[%d:%d], v12 offset:%d", 64+4*j, 67+4*j, L_MB - 32 + 16*j)
    for j in range(6):
        e("ds_read_b128 v[%d:%d], v12 offset:%d", 88+4*j, 91+4*j, L_RI - 32 + 16*j)
    e("s_waitcnt lgkmcnt(0)")
    for j in range(12):
        a, b = 2*j, 2*j+1
        e("v_sub_f32 v13, v%d, v%d", 160+a, 64+a)
        e("v_sub_f32 v14, v%d, v%d", 160+b, 64+b)
        e("v_cvt_pk_bf16_f32 v13, v13, v14")
        e("v_lshlrev_b32 v14, 16, v13")
        e("v_mul_f32 v%d, v14, v%d", 112+a, 88+a)
        e("v_and_b32 v14, 0xffff0000, v13")
        e("v_mul_f32 v%d, v14, v%d", 112+b, 88+b)
    e("v_cmp_ne_u32 vcc, 0, v2")
    e("s_nop 1")
    for i in range(1,8):
        e("v_cndmask_b32 v%d, 0, v%d, vcc", 112+i, 112+i)
    for j in range(-2,8):
        e("v_cvt_pk_bf16_f32 v%d, v%d, v%d", 188+j, 120+2*j, 121+2*j)
    for j in range(-3,7):
        e("v_cvt_pk_bf16_f32 v%d, v%d, v%d", 201+j, 120+2*j, 121+2*j)
    for j in range(-4,6):
        e("v_cvt_pk_bf16_f32 v%d, v%d, v%d", 216+j, 121+2*j, 122+2*j)
    for j in range(-3,7):
        e("v_cvt_pk_bf16_f32 v%d, v%d, v%d", 229+j, 121+2*j, 122+2*j)
    e("v_lshrrev_b32 v12, 4, v2")
    e("v_mul_u32_u24 v12, 640, v12")
    e("v_and_b32 v13, 15, v2")
    e("v_lshl_add_u32 v12, v13, 5, v12")
    e("v_add_u32 v12, v7, v12")
    for rho in range(8):
        sh = 7 - rho
        if sh % 2 == 0:
            j0 = -(sh//2); src = (188 + j0) if j0 % 2 == 0 else (201 + j0)
        else:
            j0 = -((sh+1)//2); src = (216 + j0) if j0 % 2 == 0 else (229 + j0)
        assert src % 2 == 0
        off = O_U + rho*CSTR
        e("ds_write_b128 v12, v[%d:%d] offset:%d", src, src+3, off)
        e("ds_write_b128 v12, v[%d:%d] offset:%d", src+4, src+7, off+16)
    e("s_waitcnt lgkmcnt(0)")
    e("s_barrier")
    stamp(3)
    e("v_and_b32 v12, 31, v0")
    e("v_bfe_u32 v13, v0, 5, 1")
    e("v_lshlrev_b32 v14, 4, v13")
    e("v_lshlrev_b32 v15, 4, v12")
    e("v_sub_u32 v15, v14, v15")
    e("v_add_u32 v15, v7, v15")
    e("v_add_u32 v112, %d, v15", 4080 - 3584)
    e("v_and_b32 v16, 7, v0")
    e("v_bfe_u32 v17, v0, 3, 2")
    e("v_mul_u32_u24 v16, %d, v16", CSTR)
    e("v_add_u32 v16, v7, v16")
    e("v_add_u32 v16, v14, v16")
    e("v_add_u32 v18, v7, v14")
    e("v_add_u32 v18, %d, v18", O_ZB - O_U)
    def baddr(dst, nt, delta):
        e("v_add_u32 v19, %d, v17", 4*nt - delta)
        e("v_mul_i32_i24 v20, 640, v19")
        e("v_add_u32 v20, v16, v20")
        e("v_cmp_gt_i32 vcc, 0, v19")
        e("s_nop 1")
        e("v_cndmask_b32 v%d, v20, v18, vcc", dst)
    e("v_bfe_u32 v21, v0, 6, 1")
    e("s_nop 0")
    e("v_readfirstlane_b32 s41, v21")
    for r in range(128,160):
        e("v_mov_b32 v%d, 0", r)
    e("s_cmp_eq_u32 s41, 1")
    e("s_cbranch_scc1 conv_waveB")
    def run(steps, regs_for_delta, tag):
        issued = []
        def issue(si):
            d,q,tiles = steps[si]
            st = si % 3
            offA = 512*(7-d) + 32*q
            e("ds_read_b128 v[%d:%d], v112 offset:%d", 64+16*st, 67+16*st, O_RHI + offA)
            e("ds_read_b128 v[%d:%d], v112 offset:%d", 68+16*st, 71+16*st, O_RLO + offA)
            issued.extend([si,si])
            for ti,nt in enumerate(tiles):
                e("ds_read_b128 v[%d:%d], v%d offset:%d", 72+16*st+4*ti, 75+16*st+4*ti, regs_for_delta[(nt,d)], O_U + 32*q)
                issued.append(si)
        n = len(steps)
        issue(0); issue(1)
        for si in range(n):
            if si+2 < n: issue(si+2)
            later = sum(1 for x in issued if x > si)
            e("s_waitcnt lgkmcnt(%d)", min(later,15))
            d,q,tiles = steps[si]
            st = si % 3
            for ti,nt in enumerate(tiles):
                acc = 128 + 16*nt
                e("v_mfma_f32_32x32x16_bf16 v[%d:%d], v[%d:%d], v[%d:%d], v[%d:%d]", acc, acc+15, 64+16*st, 67+16*st, 72+16*st+4*ti, 75+16*st+4*ti, acc, acc+15)
                e("v_mfma_f32_32x32x16_bf16 v[%d:%d], v[%d:%d], v[%d:%d], v[%d:%d]", acc, acc+15, 68+16*st, 71+16*st, 72+16*st+4*ti, 75+16*st+4*ti, acc, acc+15)
    regsA = {}
    rr = 114
    for d in range(4):
        baddr(rr, 0, d); regsA[(0,d)] = rr; rr += 1
    for d in range(2):
        baddr(rr, 1, d); regsA[(1,d)] = rr; rr += 1
    stepsA = [(d,q,[0,1] if d < 2 else [0]) for d in range(4) for q in range(16)]
    run(stepsA, regsA, "A")
    e("s_branch conv_loopdone")
    k.lab("conv_waveB")
    regsB = {}
    rr = 114
    for d in range(2,8):
        baddr(rr, 1, d); regsB[(1,d)] = rr; rr += 1
    stepsB = [(d,q,[1]) for d in range(2,8) for q in range(16)]
    run(stepsB, regsB, "B")
    k.lab("conv_loopdone")
    stamp(4)
    e("s_nop 7"); e("s_nop 7")
    e("s_barrier")
    e("v_and_b32 v12, 7, v0")
    e("v_bfe_u32 v13, v0, 3, 2")
    e("v_bfe_u32 v14, v0, 5, 1")
    e("v_mul_u32_u24 v13, 1056, v13")
    e("v_lshl_add_u32 v12, v12, 2, v13")
    e("v_lshl_add_u32 v12, v14, 7, v12")
    e("v_add_u32 v12, v7, v12")
    YA = 0; YB = 8704
    e("s_cmp_eq_u32 s41, 1")
    e("s_cbranch_scc1 conv_ywB")
    for nt in range(2):
        for r in range(16):
            off = YA + nt*4*1056 + 32*(8*(r//4) + r%4)
            e("ds_write_b32 v12, v%d offset:%d", 128+16*nt+r, off)
    e("s_branch conv_ywdone")
    k.lab("conv_ywB")
    for r in range(16):
        off = YB + 32*(8*(r//4) + r%4)
        e("ds_write_b32 v12, v%d offset:%d", 144+r, off)
    k.lab("conv_ywdone")
    e("s_waitcnt lgkmcnt(0)")
    e("s_barrier")
    stamp(5)
    e("v_lshrrev_b32 v13, 4, v2")
    e("v_lshlrev_b32 v12, 6, v2")
    e("v_lshl_add_u32 v12, v13, 5, v12")
    e("v_add_u32 v12, v7, v12")
    for j in range(4):
        e("ds_read_b128 v[%d:%d], v12 offset:%d", 64+4*j, 67+4*j, YA + 16*j)
    e("v_cmp_le_u32 vcc, 64, v2")
    e("v_mov_b32 v80, 0");
    for r in range(81,96): e("v_mov_b32 v%d, 0", r)
    e("s_and_saveexec_b64 s[42:43], vcc")
    e("s_cbranch_execz conv_noyb")
    for j in range(4):
        e("ds_read_b128 v[%d:%d], v12 offset:%d", 80+4*j, 83+4*j, YB - 4*1056 + 16*j)
    k.lab("conv_noyb")
    e("s_mov_b64 exec, s[42:43]")
    e("s_waitcnt lgkmcnt(0)")
    e("s_lshl_b32 s46, s21, 16")
    e("s_and_b32 s47, s21, 0xffff0000")
    e("v_mov_b32 v14, s46")
    e("v_mov_b32 v15, s47")
    e("v_cmp_eq_u32 vcc, 1, v1")
    e("s_nop 1")
    e("v_cndmask_b32 v96, v14, v15, vcc")
    for j in range(8):
        a,b = 2*j, 2*j+1
        e("v_add_f32 v13, v%d, v%d", 64+a, 80+a)
        e("v_add_f32 v14, v%d, v%d", 64+b, 80+b)
        e("v_cvt_pk_bf16_f32 v13, v13, v14")
        e("v_lshlrev_b32 v15, 16, v%d", 188+j)
        e("v_and_b32 v16, 0xffff0000, v%d", 188+j)
        e("v_mul_f32 v15, v15, v96")
        e("v_mul_f32 v16, v16, v96")
        e("v_cvt_pk_bf16_f32 v15, v15, v16")
        e("v_lshlrev_b32 v16, 16, v13")
        e("v_lshlrev_b32 v17, 16, v15")
        e("v_add_f32 v16, v16, v17")
        e("v_and_b32 v17, 0xffff0000, v13")
        e("v_and_b32 v18, 0xffff0000, v15")
        e("v_add_f32 v17, v17, v18")
        e("v_cvt_pk_bf16_f32 v16, v16, v17")
        e("v_lshlrev_b32 v17, 16, v16")
        e("v_add_f32 v17, v17, v%d", 168+a)
        e("v_and_b32 v18, 0xffff0000, v16")
        e("v_add_f32 v18, v18, v%d", 168+b)
        e("v_cvt_pk_bf16_f32 v%d, v17, v18", 100+j)
    e("v_lshlrev_b32 v12, 12, v3")
    e("v_lshl_add_u32 v12, v2, 5, v12")
    e("v_add_u32 v12, s23, v12")
    e("buffer_store_dwordx4 v[100:103], v12, s[28:31], 0 offen")
    e("buffer_store_dwordx4 v[104:107], v12, s[28:31], 0 offen offset:16")
    if STAMP:
        stamp(6)
        e("s_waitcnt lgkmcnt(0)")
        e("v_mov_b32 v20, 0x1C00000")
        e("s_lshl_b32 s3, s2, 6")
        e("v_add_u32 v20, s3, v20")
        e("v_cmp_eq_u32 vcc, 0, v0")
        e("s_and_saveexec_b64 s[42:43], vcc")
        for i in range(7):
            e("v_mov_b32 v21, s%d", 64+2*i)
            e("buffer_store_dword v21, v20, s[28:31], 0 offen offset:%d", 4*i)
    k.lab("conv_done")
    e("s_endpgm")
    return [("conva_kernel", 236), ("convb_kernel", 236)]
```

```python
from gen import *
import os

PITCH = 192
G1_SCR = 0
TB = 9216
G1_LDS = TB + 512*PITCH
K1 = "0xc0135761"
K2 = "0xbdd2d3e8"

def f32hex(x):
    import struct
    return "0x%08x" % struct.unpack("<I", struct.pack("<f", x))[0]

def gen_gemm1(k):
    e = k.e
    kernel_header(k, "gemm1a_kernel")
    e("s_mov_b32 s20, 0x%x", WS_X1T)
    e("s_branch g1_common")
    kernel_header(k, "gemm1b_kernel")
    e("s_mov_b32 s20, 0x%x", WS_X3T)
    k.lab("g1_common")
    e("s_cmp_ge_u32 s2, 224")
    e("s_cbranch_scc1 g1_done")
    e("s_load_dwordx2 s[6:7], s[0:1], 120")
    e("s_and_b32 s21, s2, 31")
    e("s_lshr_b32 s22, s2, 5")
    e("v_lshrrev_b32 v1, 3, v0")
    e("v_and_b32 v2, 7, v0")
    e("v_lshlrev_b32 v3, 12, v1")
    e("v_lshl_add_u32 v3, v2, 4, v3")
    e("s_lshl_b32 s3, s21, 7")
    e("v_add_u32 v3, s3, v3")
    e("v_and_b32 v4, 63, v0")
    e("v_lshrrev_b32 v5, 6, v0")
    e("s_lshl_b32 s3, s22, 3")
    e("v_lshl_add_u32 v6, v5, 1, s3")
    e("v_lshlrev_b32 v6, 15, v6")
    e("v_lshl_add_u32 v6, v4, 4, v6")
    e("s_waitcnt lgkmcnt(0)")
    k.srd(28, 6, WS_USED)
    e("s_add_u32 s24, s6, s20")
    e("s_addc_u32 s25, s7, 0")
    e("s_mov_b32 s26, 0x200000")
    e("s_mov_b32 s27, 0x00020000")
    for i in range(16):
        e("s_mov_b32 s40, 0x%x", i*131072)
        e("buffer_load_dwordx4 v[%d:%d], v3, s[24:27], s40 offen", 192+4*i, 195+4*i)
    e("s_mov_b32 s48, 0x%x", WS_WGP)
    e("s_mov_b32 s49, 0x%x", WS_WGP + 32768)
    e("s_mov_b32 s50, 0x%x", WS_WUP)
    e("s_mov_b32 s51, 0x%x", WS_WUP + 32768)
    def wload(stage):
        b = 64 + 16*stage
        for q in range(4):
            e("buffer_load_dwordx4 v[%d:%d], v6, s[28:31], s%d offen", b+4*q, b+4*q+3, 48+q)
        for q in range(4):
            e("s_add_u32 s%d, s%d, 1024", 48+q, 48+q)
    for st in range(4):
        wload(st)
    e("s_waitcnt vmcnt(16)")
    for j in range(64):
        e("v_lshlrev_b32 v%d, 16, v%d", 128+2*j, 192+j)
        e("v_and_b32 v%d, 0xffff0000, v%d", 129+2*j, 192+j)
    for j in range(4):
        e("v_pk_add_f32 v[%d:%d], v[%d:%d], v[%d:%d]", 32+2*j, 33+2*j, 128+2*j, 129+2*j, 136+2*j, 137+2*j)
    for i in range(2,16):
        for j in range(4):
            e("v_pk_add_f32 v[%d:%d], v[%d:%d], v[%d:%d]", 32+2*j, 33+2*j, 32+2*j, 33+2*j, 128+8*i+2*j, 129+8*i+2*j)
    e("v_lshlrev_b32 v7, 5, v0")
    e("ds_write_b128 v7, v[32:35] offset:%d", G1_SCR)
    e("ds_write_b128 v7, v[36:39] offset:%d", G1_SCR+16)
    e("s_waitcnt lgkmcnt(0)")
    e("s_barrier")
    e("v_lshlrev_b32 v8, 2, v0")
    e("v_cmp_gt_u32 vcc, 64, v0")
    e("s_and_saveexec_b64 s[42:43], vcc")
    for r in range(32):
        e("ds_read_b32 v%d, v8 offset:%d", 40+r if r < 24 else 8+r, G1_SCR + 256*r)
    e("s_waitcnt lgkmcnt(0)")
    def regs32(r): return 40+r if r < 24 else 8+r
    for half in (16,8,4,2,1):
        for r in range(half):
            e("v_add_f32 v%d, v%d, v%d", regs32(r), regs32(r), regs32(r+half))
    e("v_mul_f32 v40, 0x3b000000, v40")
    e("ds_write_b32 v8, v40 offset:%d", G1_SCR + 8192)
    e("s_mov_b64 exec, s[42:43]")
    e("s_waitcnt lgkmcnt(0)")
    e("s_barrier")
    e("v_lshlrev_b32 v9, 5, v2")
    e("ds_read_b128 v[40:43], v9 offset:%d", G1_SCR + 8192)
    e("ds_read_b128 v[44:47], v9 offset:%d", G1_SCR + 8192 + 16)
    e("s_waitcnt lgkmcnt(0)")
    for j in range(4):
        e("v_mov_b32 v%d, 0", 32+2*j); e("v_mov_b32 v%d, 0", 33+2*j)
    for i in range(16):
        for j in range(4):
            e("v_pk_add_f32 v[48:49], v[%d:%d], v[%d:%d] neg_lo:[0,1] neg_hi:[0,1]", 128+8*i+2*j, 129+8*i+2*j, 40+2*j, 41+2*j)
            e("v_pk_fma_f32 v[%d:%d], v[48:49], v[48:49], v[%d:%d]", 32+2*j, 33+2*j, 32+2*j, 33+2*j)
    e("ds_write_b128 v7, v[32:35] offset:%d", G1_SCR)
    e("ds_write_b128 v7, v[36:39] offset:%d", G1_SCR+16)
    e("s_waitcnt lgkmcnt(0)")
    e("s_barrier")
    e("s_and_saveexec_b64 s[42:43], vcc")
    for r in range(32):
        e("ds_read_b32 v%d, v8 offset:%d", regs32(r), G1_SCR + 256*r)
    e("ds_read_b32 v10, v8 offset:%d", G1_SCR + 8192)
    e("s_waitcnt lgkmcnt(0)")
    for half in (16,8,4,2,1):
        for r in range(half):
            e("v_add_f32 v%d, v%d, v%d", regs32(r), regs32(r), regs32(r+half))
    e("v_mul_f32 v40, 0x3b000000, v40")
    e("v_cvt_pk_bf16_f32 v41, v10, v40")
    e("v_lshlrev_b32 v42, 16, v41")
    e("v_and_b32 v40, 0xffff0000, v41")
    e("v_add_f32 v40, 0x3727c5ac, v40")
    e("v_cvt_pk_bf16_f32 v40, v40, v40")
    e("v_lshlrev_b32 v40, 16, v40")
    e("v_sqrt_f32 v40, v40")
    e("s_nop 0")
    e("v_cvt_pk_bf16_f32 v40, v40, v40")
    e("v_lshlrev_b32 v40, 16, v40")
    e("v_rcp_f32 v43, v40")
    e("s_nop 0")
    e("ds_write_b32 v8, v42 offset:%d", G1_SCR + 8192 + 256)
    e("ds_write_b32 v8, v43 offset:%d", G1_SCR + 8192 + 512)
    e("s_mov_b64 exec, s[42:43]")
    e("s_waitcnt lgkmcnt(0)")
    e("s_barrier")
    e("ds_read_b128 v[32:35], v9 offset:%d", G1_SCR + 8192 + 256)
    e("ds_read_b128 v[36:39], v9 offset:%d", G1_SCR + 8192 + 256 + 16)
    e("ds_read_b128 v[40:43], v9 offset:%d", G1_SCR + 8192 + 512)
    e("ds_read_b128 v[44:47], v9 offset:%d", G1_SCR + 8192 + 512 + 16)
    e("v_mul_u32_u24 v10, %d, v1", PITCH)
    e("v_lshl_add_u32 v10, v2, 4, v10")
    e("v_add_u32 v10, %d, v10", TB)
    e("v_add_u32 v15, %d, v10", 8*32*PITCH)
    e("s_waitcnt lgkmcnt(0)")
    for i in range(16):
        for j in range(4):
            a = 128+8*i+2*j
            e("v_pk_add_f32 v[48:49], v[%d:%d], v[%d:%d] neg_lo:[0,1] neg_hi:[0,1]", a, a+1, 32+2*j, 33+2*j)
            e("v_cvt_pk_bf16_f32 v50, v48, v49")
            e("v_lshlrev_b32 v48, 16, v50")
            e("v_and_b32 v49, 0xffff0000, v50")
            e("v_pk_mul_f32 v[48:49], v[48:49], v[%d:%d]", 40+2*j, 41+2*j)
            e("v_cvt_pk_bf16_f32 v%d, v48, v49", 52+j)
        e("ds_write_b128 v%d, v[52:55] offset:%d", 10 if i < 8 else 15, (i%8)*32*PITCH)
        if i < 15:
            e("s_nop 0")
    for r in range(128,256):
        e("v_mov_b32 v%d, 0", r)
    e("v_lshrrev_b32 v11, 5, v4")
    e("v_lshlrev_b32 v11, 3, v11")
    e("v_bfe_u32 v12, v4, 2, 2")
    e("v_add_u32 v11, v11, v12")
    e("v_mul_u32_u24 v11, %d, v11", PITCH)
    e("v_bfe_u32 v12, v4, 4, 1")
    e("v_lshl_add_u32 v11, v12, 5, v11")
    e("v_and_b32 v12, 3, v4")
    e("v_lshl_add_u32 v11, v12, 3, v11")
    e("v_add_u32 v11, %d, v11", TB)
    e("v_add_u32 v12, %d, v11", 16*16*PITCH)
    e("s_waitcnt lgkmcnt(0)")
    e("s_barrier")
    def uread(ks):
        p = ks % 2
        base = 11 if ks < 16 else 12
        o = (ks % 16)*16*PITCH
        for tt in range(2):
            for h in range(2):
                r = 48 + 8*p + 4*tt + 2*h
                e("ds_read_b64_tr_b16 v[%d:%d], v%d offset:%d", r, r+1, base, o + h*4*PITCH + tt*64)
    uread(0)
    for ks in range(32):
        if ks < 31:
            uread(ks+1)
        st = ks % 4
        ahead = min(3, 31-ks)
        e("s_waitcnt vmcnt(%d) lgkmcnt(%d)", 4*ahead, 4 if ks < 31 else 0)
        p = ks % 2
        for q in range(4):
            for tt in range(2):
                acc = 128 + 64*(q//2) + 16*(2*(q%2)+tt)
                w = 64 + 16*st + 4*q
                u = 48 + 8*p + 4*tt
                e("v_mfma_f32_32x32x16_bf16 v[%d:%d], v[%d:%d], v[%d:%d], v[%d:%d]", acc, acc+15, w, w+3, u, u+3, acc, acc+15)
        if ks + 4 < 32:
            wload(st)
    e("v_and_b32 v13, 31, v4")
    e("v_lshlrev_b32 v13, 4, v13")
    e("v_lshrrev_b32 v14, 5, v4")
    e("v_lshl_add_u32 v13, v14, 3, v13")
    e("s_mul_i32 s3, s21, 224")
    e("s_lshl_b32 s4, s22, 4")
    e("s_add_u32 s3, s3, s4")
    e("v_lshlrev_b32 v14, 2, v5")
    e("v_add_u32 v14, s3, v14")
    e("v_lshl_add_u32 v13, v14, 10, v13")
    e("v_add_u32 v13, 0x%x, v13", WS_H)
    e("v_mov_b32 v16, %s", K1)
    e("s_mov_b32 s44, %s", K2)
    e("s_nop 7"); e("s_nop 7")
    for tt in range(2):
        e("s_mov_b32 s40, %d", tt*112*1024)
        for ft in range(2):
            G = 128 + 16*(2*ft+tt); U = G + 64
            for a in range(4):
                for pr in range(2):
                    r0 = 4*a + 2*pr
                    e("v_cvt_pk_bf16_f32 v20, v%d, v%d", G+r0, G+r0+1)
                    e("v_cvt_pk_bf16_f32 v21, v%d, v%d", U+r0, U+r0+1)
                    e("v_lshlrev_b32 v22, 16, v20")
                    e("v_and_b32 v23, 0xffff0000, v20")
                    e("v_mul_f32 v24, v22, v22")
                    e("v_mul_f32 v25, v23, v23")
                    e("v_fma_f32 v24, v24, s44, v16")
                    e("v_fma_f32 v25, v25, s44, v16")
                    e("v_mul_f32 v24, v24, v22")
                    e("v_mul_f32 v25, v25, v23")
                    e("v_exp_f32 v24, v24")
                    e("v_exp_f32 v25, v25")
                    e("s_nop 0")
                    e("v_add_f32 v24, 1.0, v24")
                    e("v_add_f32 v25, 1.0, v25")
                    e("v_rcp_f32 v24, v24")
                    e("v_rcp_f32 v25, v25")
                    e("s_nop 0")
                    e("v_mul_f32 v24, v24, v22")
                    e("v_mul_f32 v25, v25, v23")
                    e("v_cvt_pk_bf16_f32 v24, v24, v25")
                    e("v_lshlrev_b32 v22, 16, v24")
                    e("v_and_b32 v23, 0xffff0000, v24")
                    e("v_lshlrev_b32 v24, 16, v21")
                    e("v_and_b32 v25, 0xffff0000, v21")
                    e("v_mul_f32 v22, v22, v24")
                    e("v_mul_f32 v23, v23, v25")
                    e("v_cvt_pk_bf16_f32 v%d, v22, v23", 26+2*(a%2)+pr)
                e("buffer_store_dwordx2 v[%d:%d], v13, s[28:31], s40 offen offset:%d", 26+2*(a%2), 27+2*(a%2), (2*ft + a//2)*1024 + (a%2)*512)
    k.lab("g1_done")
    e("s_endpgm")
    return [("gemm1a_kernel", 256), ("gemm1b_kernel", 256)]
```

```python
from gen import *

DP = 272
WSTR = 64*DP
G2_LDS = 4*WSTR
NST = 6

def gen_gemm2(k):
    e = k.e
    kernel_header(k, "gemm2a_kernel")
    e("s_mov_b32 s20, 0")
    e("s_mov_b32 s23, 0x%x", WS_X1T)
    e("s_branch g2_common")
    kernel_header(k, "gemm2b_kernel")
    e("s_mov_b32 s20, 1")
    e("s_mov_b32 s23, 0x%x", WS_X3T)
    k.lab("g2_common")
    e("s_cmp_ge_u32 s2, 256")
    e("s_cbranch_scc1 g2_done")
    e("s_load_dwordx2 s[6:7], s[0:1], 120")
    e("s_load_dwordx2 s[8:9], s[0:1], 104")
    e("s_and_b32 s21, s2, 31")
    e("s_lshr_b32 s22, s2, 5")
    e("v_and_b32 v4, 63, v0")
    e("v_lshrrev_b32 v5, 6, v0")
    e("v_mul_u32_u24 v6, %d, v5", 28*1024)
    e("v_lshl_add_u32 v6, v4, 4, v6")
    e("s_mul_i32 s48, s21, %d", 2*114688)
    e("s_add_u32 s48, s48, 0x%x", WS_H)
    e("s_add_u32 s49, s48, 114688")
    e("s_mul_i32 s50, s22, %d", 2*114688)
    e("s_add_u32 s50, s50, 0x%x", WS_WDP)
    e("s_add_u32 s51, s50, 114688")
    e("s_waitcnt lgkmcnt(0)")
    k.srd(28, 6, WS_USED)
    def ld(stage):
        b = 64 + 16*stage
        for q in range(4):
            e("buffer_load_dwordx4 v[%d:%d], v6, s[28:31], s%d offen", b+4*q, b+4*q+3, 48+q)
        for q in range(4):
            e("s_add_u32 s%d, s%d, 1024", 48+q, 48+q)
    for st in range(NST):
        ld(st)
    e("v_lshrrev_b32 v1, 3, v0")
    e("v_and_b32 v2, 7, v0")
    e("s_lshl_b32 s3, s22, 6")
    e("v_add_u32 v3, s3, v1")
    e("v_lshlrev_b32 v3, 12, v3")
    e("v_lshl_add_u32 v3, v2, 4, v3")
    e("s_lshl_b32 s3, s21, 7")
    e("s_add_u32 s3, s3, s23")
    e("s_add_u32 s4, s3, %d", 32*4096)
    e("buffer_load_dwordx4 v[224:227], v3, s[28:31], s3 offen")
    e("buffer_load_dwordx4 v[228:231], v3, s[28:31], s4 offen")
    for r in range(160,224):
        e("v_mov_b32 v%d, 0", r)
    for ks in range(28):
        st = ks % NST
        ahead = min(NST-1, 27-ks)
        extra = 2 if ks < 1 else 0
        e("s_waitcnt vmcnt(%d)", 4*ahead + (2 if ks <= NST-1 and ks == 0 else 0))
        for i in range(2):
            for j in range(2):
                acc = 160 + 16*(2*i+j)
                a = 64 + 16*st + 4*i
                b = 64 + 16*st + 8 + 4*j
                e("v_mfma_f32_32x32x16_bf16 v[%d:%d], v[%d:%d], v[%d:%d], v[%d:%d]", acc, acc+15, a, a+3, b, b+3, acc, acc+15)
        if ks + NST < 28:
            ld(st)
    e("v_and_b32 v7, 31, v4")
    e("v_mul_u32_u24 v7, %d, v7", DP)
    e("v_lshrrev_b32 v8, 5, v4")
    e("v_lshl_add_u32 v7, v8, 4, v7")
    e("v_mul_u32_u24 v8, %d, v5", WSTR)
    e("v_add_u32 v7, v7, v8")
    e("s_nop 7"); e("s_nop 7")
    for i in range(2):
        for j in range(2):
            acc = 160 + 16*(2*i+j)
            for a in range(4):
                e("ds_write_b128 v7, v[%d:%d] offset:%d", acc+4*a, acc+4*a+3, 32*j*DP + (32*i + 8*a)*4)
    e("s_waitcnt lgkmcnt(0) vmcnt(0)")
    e("s_barrier")
    e("v_mul_u32_u24 v9, %d, v1", DP)
    e("v_lshl_add_u32 v9, v2, 5, v9")
    for it in range(2):
        for w in range(4):
            for h in range(2):
                e("ds_read_b128 v[%d:%d], v9 offset:%d", 64+32*it+8*w+4*h, 67+32*it+8*w+4*h, w*WSTR + it*32*DP + 16*h)
    e("s_waitcnt lgkmcnt(0)")
    for it in range(2):
        b = 64 + 32*it
        for w in range(1,4):
            for j in range(4):
                e("v_pk_add_f32 v[%d:%d], v[%d:%d], v[%d:%d]", b+2*j, b+2*j+1, b+2*j, b+2*j+1, b+8*w+2*j, b+8*w+2*j+1)
        for j in range(4):
            x = 224 + 4*it + j
            e("v_cvt_pk_bf16_f32 v10, v%d, v%d", b+2*j, b+2*j+1)
            e("v_lshlrev_b32 v12, 16, v10")
            e("v_and_b32 v13, 0xffff0000, v10")
            e("v_lshlrev_b32 v14, 16, v%d", x)
            e("v_and_b32 v15, 0xffff0000, v%d", x)
            e("v_add_f32 v12, v12, v14")
            e("v_add_f32 v13, v13, v15")
            e("v_cvt_pk_bf16_f32 v%d, v12, v13", 128+4*it+j)
    e("s_cmp_eq_u32 s20, 1")
    e("s_cbranch_scc1 g2_outmode")
    e("s_lshl_b32 s3, s21, 7")
    e("s_add_u32 s3, s3, 0x%x", WS_X2T)
    e("s_add_u32 s4, s3, %d", 32*4096)
    e("buffer_store_dwordx4 v[128:131], v3, s[28:31], s3 offen")
    e("buffer_store_dwordx4 v[132:135], v3, s[28:31], s4 offen")
    e("s_barrier")
    for it in range(2):
        for j in range(4):
            e("v_lshlrev_b32 v%d, 16, v%d", 64+8*it+2*j, 128+4*it+j)
            e("v_and_b32 v%d, 0xffff0000, v%d", 65+8*it+2*j, 128+4*it+j)
        e("ds_write_b128 v9, v[%d:%d] offset:%d", 64+8*it, 67+8*it, it*32*DP)
        e("ds_write_b128 v9, v[%d:%d] offset:%d", 68+8*it, 71+8*it, it*32*DP+16)
    e("s_waitcnt lgkmcnt(0)")
    e("s_barrier")
    e("v_cmp_gt_u32 vcc, 64, v0")
    e("s_and_saveexec_b64 s[42:43], vcc")
    e("s_cbranch_execz g2_done")
    e("v_lshlrev_b32 v10, 2, v0")
    for d in range(64):
        e("ds_read_b32 v%d, v10 offset:%d", 64+d, d*DP)
    e("s_waitcnt lgkmcnt(0)")
    for r in range(0,64,2):
        e("v_add_f32 v%d, v%d, v%d", 128+r//2, 64+r, 65+r)
    n = 32
    while n > 1:
        for r in range(n//2):
            e("v_add_f32 v%d, v%d, v%d", 128+r, 128+r, 128+r+n//2)
        n //= 2
    e("v_mul_f32 v128, 0x3c800000, v128")
    e("v_sub_f32 v11, v64, v128")
    e("v_mul_f32 v129, v11, v11")
    for d in range(1,64):
        e("v_sub_f32 v11, v%d, v128", 64+d)
        e("v_fma_f32 v129, v11, v11, v129")
    e("s_lshl_b32 s3, s22, 13")
    e("s_lshl_b32 s4, s21, 8")
    e("s_add_u32 s3, s3, s4")
    e("s_add_u32 s3, s3, 0x%x", WS_ST3)
    e("s_add_u32 s4, s3, 0x10000")
    e("buffer_store_dword v128, v10, s[28:31], s3 offen")
    e("buffer_store_dword v129, v10, s[28:31], s4 offen")
    e("s_branch g2_done")
    k.lab("g2_outmode")
    k.srd(24, 8, 2*1024*1024)
    e("s_barrier")
    e("v_mul_u32_u24 v10, %d, v2", 8*144)
    e("v_lshl_add_u32 v10, v1, 1, v10")
    for it in range(2):
        for j in range(4):
            x = 128 + 4*it + j
            e("ds_write_b16 v10, v%d offset:%d", x, (2*j)*144 + it*64)
            e("ds_write_b16_d16_hi v10, v%d offset:%d", x, (2*j+1)*144 + it*64)
    e("s_waitcnt lgkmcnt(0)")
    e("s_barrier")
    e("v_mul_u32_u24 v10, 144, v1")
    e("v_lshl_add_u32 v10, v2, 4, v10")
    e("ds_read_b128 v[64:67], v10")
    e("ds_read_b128 v[68:71], v10 offset:%d", 32*144)
    e("v_lshlrev_b32 v11, 10, v1")
    e("v_lshl_add_u32 v11, v2, 4, v11")
    e("s_lshl_b32 s3, s21, 16")
    e("s_lshl_b32 s4, s22, 7")
    e("s_add_u32 s3, s3, s4")
    e("s_add_u32 s4, s3, 32768")
    e("s_waitcnt lgkmcnt(0)")
    e("buffer_store_dwordx4 v[64:67], v11, s[24:27], s3 offen")
    e("buffer_store_dwordx4 v[68:71], v11, s[24:27], s4 offen")
    k.lab("g2_done")
    e("s_endpgm")
    return [("gemm2a_kernel", 232), ("gemm2b_kernel", 232)]
```

```python
import sys, re

NAME = "interleave_layers__ssm_conv_s4__geglu_ffn__prompt"
WS_X1T=0x0000000; WS_X2T=0x0200000; WS_X3T=0x0400000; WS_H=0x0800000
WS_X0T=0x0600000
WS_ST1=0x1000000; WS_ST3=0x1020000; WS_K=0x1100000
WS_WGP=0x1600000; WS_WUP=0x1800000; WS_WDP=0x1A00000; WS_USED=0x1C00000

class K:
    def __init__(s):
        s.L = []
    def e(s, fmt, *a):
        t = (fmt % a if a else fmt)
        m = re.search(r"offset:(\d+)", t)
        if m:
            lim = 4095 if t.startswith("buffer_") else 65535
            assert int(m.group(1)) <= lim, t
        s.L.append("    " + t)
    def lab(s, n):
        s.L.append(n + ":")
    def c(s, t):
        s.L.append("    ; " + t)
    def srd(s, d, p, nbytes):
        s.e("s_mov_b32 s%d, s%d", d, p)
        s.e("s_mov_b32 s%d, s%d", d+1, p+1)
        s.e("s_mov_b32 s%d, 0x%x", d+2, nbytes)
        s.e("s_mov_b32 s%d, 0x00020000", d+3)
    def text(s):
        return "\n".join(s.L) + "\n"

LOG2E = "0x3fb8aa3b"
INV2PI = "0.15915494"

def kernel_header(k, name):
    k.L.append(".globl %s" % name)
    k.L.append(".p2align 8")
    k.L.append(".type %s,@function" % name)
    k.lab(name)

def descriptor(name, vgpr, sgpr=102):
    acc = (vgpr + 3)//4*4
    return """.amdhsa_kernel %s
  .amdhsa_next_free_vgpr %d
  .amdhsa_next_free_sgpr %d
  .amdhsa_accum_offset %d
  .amdhsa_group_segment_fixed_size 0
  .amdhsa_kernarg_size 128
  .amdhsa_user_sgpr_count 2
  .amdhsa_user_sgpr_kernarg_segment_ptr 1
  .amdhsa_system_sgpr_workgroup_id_x 1
.end_amdhsa_kernel
""" % (name, vgpr, sgpr, acc)

def transpose8(k, src, dst):
    k.e("s_mov_b32 s62, 0x05040100")
    k.e("s_mov_b32 s63, 0x07060302")
    for c in range(8):
        for p in range(4):
            k.e("v_perm_b32 v%d, v%d, v%d, s%d", dst+4*c+p, src+4*(2*p+1)+c//2, src+4*(2*p)+c//2, 62 + (c%2))

def gen_kgen(k):
    name = "kgen_kernel"
    kernel_header(k, name)
    e = k.e
    e("s_cmp_ge_u32 s2, 744")
    e("s_cbranch_scc1 kg_done")
    e("s_load_dwordx16 s[4:19], s[0:1], 0")
    e("s_load_dwordx2 s[20:21], s[0:1], 120")
    e("s_waitcnt lgkmcnt(0)")
    k.srd(52, 20, WS_USED)
    e("s_cmp_ge_u32 s2, 512")
    e("s_cbranch_scc1 kg_stats")
    for i,(d,p) in enumerate([(24,6),(28,8),(32,10),(36,12),(40,14),(44,16)]):
        k.srd(d, p, 512*128*2)
    k.srd(48, 18, 1024)
    k.c("phase 1: per-mode parameters -> LDS")
    e("v_and_b32 v1, 127, v0")
    e("s_lshl_b32 s3, s2, 8")
    e("v_lshl_add_u32 v2, v1, 1, s3")
    e("buffer_load_ushort v4, v2, s[24:27], 0 offen")
    e("buffer_load_ushort v5, v2, s[28:31], 0 offen")
    e("buffer_load_ushort v6, v2, s[32:35], 0 offen")
    e("buffer_load_ushort v7, v2, s[36:39], 0 offen")
    e("buffer_load_ushort v8, v2, s[40:43], 0 offen")
    e("buffer_load_ushort v9, v2, s[44:47], 0 offen")
    e("s_lshl_b32 s3, s2, 1")
    e("v_mov_b32 v10, s3")
    e("buffer_load_ushort v11, v10, s[48:51], 0 offen")
    e("s_waitcnt vmcnt(0)")
    for r in (4,5,6,7,8,9,11):
        e("v_lshlrev_b32 v%d, 16, v%d", r, r)
    e("v_mul_f32 v12, %s, v11", LOG2E)
    e("v_exp_f32 v12, v12")
    e("s_nop 0")
    e("v_cvt_pk_bf16_f32 v12, v12, v12")
    e("v_lshlrev_b32 v12, 16, v12")
    e("v_mul_f32 v20, v12, v4")
    e("v_mul_f32 v20, %s, v20", LOG2E)
    e("v_mul_f32 v21, v12, v5")
    e("v_mul_f32 v21, %s, v21", INV2PI)
    e("v_mul_f32 v15, v12, v6")
    e("v_mul_f32 v16, v12, v7")
    e("v_mul_f32 v22, v8, v15")
    e("v_fma_f32 v22, -v9, v16, v22")
    e("v_mul_f32 v23, v8, v16")
    e("v_fma_f32 v23, v9, v15, v23")
    e("v_lshlrev_b32 v3, 4, v1")
    e("ds_write_b128 v3, v[20:23]")
    e("s_waitcnt lgkmcnt(0)")
    e("s_barrier")
    k.c("phase 2: per-wave segment tile via f32 MFMA")
    e("v_lshrrev_b32 v24, 6, v0")
    e("s_nop 0")
    e("v_readfirstlane_b32 s56, v24")
    e("s_lshl_b32 s57, 1, s56")
    e("s_lshl_b32 s58, 128, s56")
    e("s_cmp_eq_u32 s56, 0")
    e("s_cselect_b32 s58, 0, s58")
    e("s_lshl_b32 s59, s57, 4")
    e("v_and_b32 v25, 15, v0")
    e("v_bfe_u32 v26, v0, 4, 2")
    e("v_mul_u32_u24 v27, s59, v25")
    e("v_add_u32 v27, s58, v27")
    e("v_cvt_f32_u32 v27, v27")
    e("v_mul_u32_u24 v28, s57, v25")
    e("v_cvt_f32_u32 v28, v28")
    e("v_lshlrev_b32 v29, 4, v26")
    for r in range(32,36):
        e("v_mov_b32 v%d, 0", r)
    e("ds_read_b128 v[36:39], v29")
    for q in range(32):
        P = 36 if q % 2 == 0 else 52
        Pn = 52 if q % 2 == 0 else 36
        if q < 31:
            e("ds_read_b128 v[%d:%d], v29 offset:%d", Pn, Pn+3, (q+1)*64)
            e("s_waitcnt lgkmcnt(1)")
        else:
            e("s_waitcnt lgkmcnt(0)")
        a2,b2,cr,ci = P,P+1,P+2,P+3
        e("v_mul_f32 v40, v%d, v27", a2)
        e("v_mul_f32 v41, v%d, v27", b2)
        e("v_mul_f32 v48, v%d, v28", a2)
        e("v_mul_f32 v49, v%d, v28", b2)
        e("v_fract_f32 v41, v41")
        e("v_fract_f32 v49, v49")
        e("v_exp_f32 v40, v40")
        e("v_exp_f32 v48, v48")
        e("v_sin_f32 v42, v41")
        e("v_cos_f32 v43, v41")
        e("v_sin_f32 v56, v49")
        e("v_cos_f32 v57, v49")
        e("s_nop 0")
        e("v_mul_f32 v44, v40, v43")
        e("v_mul_f32 v45, v40, v42")
        e("v_mul_f32 v50, v48, v57")
        e("v_mul_f32 v51, v48, v56")
        e("v_mul_f32 v46, v%d, v44", cr)
        e("v_fma_f32 v46, -v%d, v45, v46", ci)
        e("v_mul_f32 v47, v%d, v45", cr)
        e("v_fma_f32 v47, v%d, v44, v47", ci)
        e("v_sub_f32 v47, 0, v47")
        e("s_nop 1")
        e("v_mfma_f32_16x16x4_f32 v[32:35], v46, v50, v[32:35]")
        e("v_mfma_f32_16x16x4_f32 v[32:35], v47, v51, v[32:35]")
    k.c("phase 3: table to LDS")
    e("v_lshrrev_b32 v60, 4, v0")
    e("v_and_b32 v60, 3, v60")
    e("v_lshlrev_b32 v60, 8, v60")
    e("v_lshl_add_u32 v60, v25, 2, v60")
    e("s_lshl_b32 s60, s56, 10")
    e("v_add_u32 v60, s60, v60")
    e("s_nop 7")
    e("s_nop 3")
    for r in range(4):
        e("ds_write_b32 v60, v%d offset:%d", 32+r, 2048 + 64*r)
    e("s_waitcnt lgkmcnt(0)")
    e("s_barrier")
    k.c("phase 4: expand to reversed hi/lo tables")
    e("v_lshlrev_b32 v61, 3, v0")
    e("v_sub_u32 v61, 2047, v61")
    for ee in range(8):
        e("v_subrev_u32 v62, %d, v61", ee)
        e("v_cvt_f32_u32 v62, v62")
        e("s_nop 0")
        e("v_cvt_pk_bf16_f32 v62, v62, v62")
        e("v_lshlrev_b32 v62, 16, v62")
        e("v_cvt_u32_f32 v62, v62")
        e("v_mov_b32 v63, 0")
        for thr in (256,512,1024):
            e("v_cmp_le_u32 vcc, %d, v62", thr)
            e("s_nop 1")
            e("v_addc_co_u32 v63, vcc, 0, v63, vcc")
        e("v_lshrrev_b32 v62, v63, v62")
        e("v_min_u32 v64, 1, v63")
        e("v_lshlrev_b32 v64, 7, v64")
        e("v_sub_u32 v62, v62, v64")
        e("v_lshl_add_u32 v62, v63, 8, v62")
        e("v_lshlrev_b32 v62, 2, v62")
        e("ds_read_b32 v%d, v62 offset:2048", 40+ee)
    e("s_waitcnt lgkmcnt(0)")
    for j in range(4):
        a,b = 40+2*j, 41+2*j
        e("v_cvt_pk_bf16_f32 v%d, v%d, v%d", 32+j, a, b)
        e("v_lshlrev_b32 v62, 16, v%d", 32+j)
        e("v_and_b32 v63, 0xffff0000, v%d", 32+j)
        e("v_sub_f32 v62, v%d, v62", a)
        e("v_sub_f32 v63, v%d, v63", b)
        e("v_cvt_pk_bf16_f32 v%d, v62, v63", 36+j)
    e("s_lshl_b32 s3, s2, 13")
    e("s_add_u32 s3, s3, 0x%x", WS_K)
    e("v_lshl_add_u32 v61, v0, 4, s3")
    e("buffer_store_dwordx4 v[32:35], v61, s[52:55], 0 offen")
    e("v_add_u32 v61, 4096, v61")
    e("buffer_store_dwordx4 v[36:39], v61, s[52:55], 0 offen")
    e("s_branch kg_done")
    k.lab("kg_stats")
    e("s_cmp_ge_u32 s2, 576")
    e("s_cbranch_scc1 kg_pack")
    k.srd(24, 4, 2*1024*1024)
    e("s_sub_u32 s3, s2, 512")
    e("s_lshl_b32 s3, s3, 5")
    e("v_lshrrev_b32 v1, 6, v0")
    e("v_lshlrev_b32 v1, 3, v1")
    e("v_add_u32 v1, s3, v1")
    e("v_and_b32 v2, 63, v0")
    e("v_lshlrev_b32 v3, 10, v1")
    e("v_lshl_add_u32 v3, v2, 4, v3")
    for r in range(8):
        e("s_mov_b32 s4, %d", 1024*r)
        e("buffer_load_dwordx4 v[%d:%d], v3, s[24:27], s4 offen", 4+4*r, 7+4*r)
    e("v_lshrrev_b32 v40, 3, v2")
    e("v_lshlrev_b32 v40, 13, v40")
    e("v_lshl_add_u32 v40, v1, 2, v40")
    e("v_add_u32 v40, 0x%x, v40", WS_ST1)
    e("v_and_b32 v41, 7, v2")
    e("v_cmp_eq_u32 vcc, 0, v41")
    e("s_mov_b64 s[60:61], vcc")
    e("v_lshlrev_b32 v42, 15, v2")
    e("v_lshl_add_u32 v42, v1, 1, v42")
    e("v_add_u32 v42, 0x%x, v42", WS_X0T)
    e("s_waitcnt vmcnt(0)")
    transpose8(k, 4, 64)
    for i in range(8):
        e("s_mov_b32 s4, %d", 4096*i)
        e("buffer_store_dwordx4 v[%d:%d], v42, s[52:55], s4 offen", 64+4*i, 67+4*i)
    def bfly(v, tmp):
        for ctl in ("quad_perm:[1,0,3,2]","quad_perm:[2,3,0,1]","row_half_mirror"):
            e("s_nop 1")
            e("v_add_f32_dpp v%d, v%d, v%d %s row_mask:0xf bank_mask:0xf", v, v, v, ctl)
    for r in range(8):
        b = 4+4*r
        for j in range(4):
            e("v_lshlrev_b32 v%d, 16, v%d", 44+2*j, b+j)
            e("v_and_b32 v%d, 0xffff0000, v%d", 45+2*j, b+j)
        e("v_add_f32 v52, v44, v45")
        for j in range(2,8):
            e("v_add_f32 v52, v52, v%d", 44+j)
        bfly(52, 53)
        e("v_mul_f32 v52, 0x3c800000, v52")
        for j in range(8):
            e("v_sub_f32 v%d, v%d, v52", 44+j, 44+j)
        e("v_mul_f32 v53, v44, v44")
        for j in range(1,8):
            e("v_fma_f32 v53, v%d, v%d, v53", 44+j, 44+j)
        bfly(53, 54)
        e("s_mov_b64 exec, s[60:61]")
        e("buffer_store_dword v52, v40, s[52:55], 0 offen offset:%d", 4*r)
        e("v_add_u32 v54, 0x10000, v40")
        e("buffer_store_dword v53, v54, s[52:55], 0 offen offset:%d", 4*r)
        e("s_mov_b64 exec, -1")
    e("s_branch kg_done")
    k.lab("kg_pack")
    e("s_load_dwordx4 s[4:7], s[0:1], 80")
    e("s_load_dwordx2 s[8:9], s[0:1], 96")
    e("s_sub_u32 s3, s2, 576")
    e("s_waitcnt lgkmcnt(0)")
    e("s_mov_b32 s10, 0x%x", WS_WGP)
    e("s_mov_b32 s11, 12")
    e("s_cmp_lt_u32 s3, 56")
    e("s_cbranch_scc1 kg_pk_sel")
    e("s_sub_u32 s3, s3, 56")
    e("s_mov_b32 s4, s6"); e("s_mov_b32 s5, s7")
    e("s_mov_b32 s10, 0x%x", WS_WUP)
    e("s_cmp_lt_u32 s3, 56")
    e("s_cbranch_scc1 kg_pk_sel")
    e("s_sub_u32 s3, s3, 56")
    e("s_mov_b32 s4, s8"); e("s_mov_b32 s5, s9")
    e("s_mov_b32 s10, 0x%x", WS_WDP)
    e("s_mov_b32 s12, 1024"); e("s_mov_b32 s13, 112")
    e("s_and_b32 s14, s3, 1"); e("s_lshr_b32 s15, s3, 1")
    e("s_branch kg_pk_go")
    k.lab("kg_pk_sel")
    e("s_mov_b32 s12, 3584"); e("s_mov_b32 s13, 32")
    e("s_mul_i32 s15, s3, 37"); e("s_lshr_b32 s15, s15, 8")
    e("s_mul_i32 s14, s15, 7"); e("s_sub_u32 s14, s3, s14")
    k.lab("kg_pk_go")
    k.srd(24, 4, 512*1792*2)
    e("v_and_b32 v1, 31, v0")
    e("s_lshl_b32 s14, s14, 5")
    e("v_add_u32 v1, s14, v1")
    e("v_lshrrev_b32 v2, 5, v0")
    e("s_lshl_b32 s15, s15, 3")
    e("v_add_u32 v2, s15, v2")
    e("v_lshlrev_b32 v3, 3, v2")
    e("v_mul_lo_u32 v3, v3, s12")
    e("v_lshl_add_u32 v3, v1, 4, v3")
    e("s_mov_b32 s16, 0")
    for r in range(8):
        e("buffer_load_dwordx4 v[%d:%d], v3, s[24:27], s16 offen", 4+4*r, 7+4*r)
        e("s_add_u32 s16, s16, s12")
    e("v_lshrrev_b32 v40, 2, v1")
    e("v_mul_lo_u32 v40, v40, s13")
    e("v_lshrrev_b32 v41, 1, v2")
    e("v_add_u32 v40, v40, v41")
    e("v_lshlrev_b32 v40, 6, v40")
    e("v_and_b32 v41, 3, v1")
    e("v_lshl_add_u32 v40, v41, 3, v40")
    e("v_and_b32 v41, 1, v2")
    e("v_lshl_add_u32 v40, v41, 5, v40")
    e("v_lshlrev_b32 v40, 4, v40")
    e("v_add_u32 v40, s10, v40")
    e("s_waitcnt vmcnt(0)")
    transpose8(k, 4, 64)
    for i in range(8):
        e("buffer_store_dwordx4 v[%d:%d], v40, s[52:55], 0 offen offset:%d", 64+4*i, 67+4*i, 16*i)
    k.lab("kg_done")
    e("s_endpgm")
    return name, 96

def main():
    import conv, gemm1, gemm2
    k = K()
    kernels = []
    kernels.append(gen_kgen(k))
    kernels.extend(conv.gen_conv(k))
    kernels.extend(gemm1.gen_gemm1(k))
    kernels.extend(gemm2.gen_gemm2(k))
    launches = [("kgen_kernel", (744,1,1), (256,1,1), 8192),
                ("conva_kernel", (256,1,1), (256,1,1), conv.CONV_LDS),
                ("gemm1a_kernel", (224,1,1), (256,1,1), gemm1.G1_LDS),
                ("gemm2a_kernel", (256,1,1), (256,1,1), gemm2.G2_LDS),
                ("convb_kernel", (256,1,1), (256,1,1), conv.CONV_LDS),
                ("gemm1b_kernel", (224,1,1), (256,1,1), gemm1.G1_LDS),
                ("gemm2b_kernel", (256,1,1), (256,1,1), gemm2.G2_LDS)]
    hdr = []
    for (n,g,b,l) in launches:
        hdr.append("; @launch kernel=%s grid=(%d,%d,%d) block=(%d,%d,%d) lds=%d" % (n,*g,*b,l))
    out = "\n".join(hdr) + "\n.amdgcn_target \"amdgcn-amd-amdhsa--gfx950\"\n.text\n" + k.text()
    out += ".section .rodata,\"a\"\n"
    for (n,v) in kernels:
        out += ".p2align 6\n" + descriptor(n, v)
    path = sys.argv[1] if len(sys.argv) > 1 else "cdna_kernels/%s.s" % NAME
    open(path, "w").write(out)
    print("wrote", path, len(out), "bytes")

if __name__ == "__main__":
    main()
```

```python
from gen import *

L_MB = 64; L_RI = 8192+128
CH0 = 16640
R_SZ = 4608
CSTR = 5136
CHB = 2*R_SZ + 8*CSTR + 512
O_RHI = 0; O_RLO = R_SZ; O_U = 2*R_SZ; O_ZB = 2*R_SZ + 8*CSTR
CONV_LDS = CH0 + 2*CHB

import os
STAMP = os.environ.get("STAMP")
def gen_conv(k):
    e = k.e
    def stamp(i):
        if STAMP:
            e("s_memtime s[%d:%d]", 64+2*i, 65+2*i)
    kernel_header(k, "conva_kernel")
    e("s_mov_b32 s20, 0")
    e("s_branch conv_common")
    kernel_header(k, "convb_kernel")
    e("s_mov_b32 s20, 1")
    k.lab("conv_common")
    e("s_cmp_ge_u32 s2, 256")
    e("s_cbranch_scc1 conv_done")
    stamp(0)
    e("s_load_dwordx2 s[4:5], s[0:1], 0")
    e("s_load_dwordx2 s[6:7], s[0:1], 120")
    e("s_load_dwordx2 s[8:9], s[0:1], 64")
    e("s_waitcnt lgkmcnt(0)")
    k.srd(28, 6, 0x1E00000 if STAMP else WS_USED)
    e("s_lshl_b32 s3, s2, 2")
    e("s_load_dword s21, s[8:9], s3")
    e("s_cmp_eq_u32 s20, 0")
    e("s_mov_b32 s22, 0x%x", WS_ST3)
    e("s_mov_b32 s23, 0x%x", WS_X3T)
    e("s_cmp_eq_u32 s20, 0")
    e("s_cselect_b32 s22, 0x%x, s22", WS_ST1)
    e("s_cselect_b32 s23, 0x%x, s23", WS_X1T)
    e("s_mov_b32 s10, 0x%x", WS_X2T)
    e("s_cselect_b32 s10, 0x%x, s10", WS_X0T)
    e("s_add_u32 s24, s6, s10")
    e("s_addc_u32 s25, s7, 0")
    e("s_mov_b32 s26, 0x200000")
    e("s_mov_b32 s27, 0x00020000")
    e("v_lshrrev_b32 v1, 7, v0")
    e("v_and_b32 v2, 127, v0")
    e("s_lshl_b32 s3, s2, 1")
    e("v_add_u32 v3, s3, v1")
    e("v_lshlrev_b32 v6, 12, v3")
    e("v_lshl_add_u32 v6, v2, 5, v6")
    e("v_add_u32 v6, -16, v6")
    e("buffer_load_dwordx4 v[144:147], v6, s[24:27], 0 offen")
    e("buffer_load_dwordx4 v[148:151], v6, s[24:27], 0 offen offset:16")
    e("buffer_load_dwordx4 v[152:155], v6, s[24:27], 0 offen offset:32")
    e("v_lshlrev_b32 v5, 13, v3")
    e("v_lshl_add_u32 v5, v2, 4, v5")
    e("v_add_u32 v5, 0x%x, v5", WS_K)
    for j in range(4):
        e("s_mov_b32 s40, %d", j*2048)
        e("buffer_load_dwordx4 v[%d:%d], v5, s[28:31], s40 offen", 128+4*j, 131+4*j)
    e("v_lshlrev_b32 v4, 5, v0")
    e("v_add_u32 v4, s22, v4")
    for c in range(8):
        for h in range(2):
            e("s_mov_b32 s40, %d", c*8192 + h*16)
            e("buffer_load_dwordx4 v[%d:%d], v4, s[28:31], s40 offen", 8+8*c+4*h, 11+8*c+4*h)
    for c in range(8):
        for h in range(2):
            e("s_mov_b32 s40, %d", 0x10000 + c*8192 + h*16)
            e("buffer_load_dwordx4 v[%d:%d], v4, s[28:31], s40 offen", 184+8*c+4*h, 187+8*c+4*h)
    stamp(1)
    e("v_mov_b32 v72, 0"); e("v_mov_b32 v73, 0"); e("v_mov_b32 v74, 0"); e("v_mov_b32 v75, 0")
    e("v_mul_u32_u24 v7, %d, v1", CHB)
    e("v_add_u32 v7, %d, v7", CH0)
    e("v_lshl_add_u32 v85, v2, 4, v7")
    e("v_cmp_gt_u32 vcc, 32, v2")
    e("s_and_saveexec_b64 s[42:43], vcc")
    e("ds_write_b128 v85, v[72:75] offset:%d", O_RHI + 4096)
    e("ds_write_b128 v85, v[72:75] offset:%d", O_RLO + 4096)
    e("ds_write_b128 v85, v[72:75] offset:%d", O_ZB)
    e("s_mov_b64 exec, s[42:43]")
    e("s_waitcnt vmcnt(16)")
    for i in range(8):
        m = [8+8*c+i for c in range(8)]
        e("v_add_f32 v80, v%d, v%d", m[0], m[1])
        e("v_add_f32 v81, v%d, v%d", m[2], m[3])
        e("v_add_f32 v82, v%d, v%d", m[4], m[5])
        e("v_add_f32 v83, v%d, v%d", m[6], m[7])
        e("v_add_f32 v80, v80, v81")
        e("v_add_f32 v82, v82, v83")
        e("v_add_f32 v80, v80, v82")
        e("v_mul_f32 v%d, 0.125, v80", 72+i)
        e("v_sub_f32 v81, v%d, v%d", m[0], 72+i)
        e("v_mul_f32 v%d, v81, v81", 88+i)
        for c in range(1,8):
            e("v_sub_f32 v81, v%d, v%d", m[c], 72+i)
            e("v_fma_f32 v%d, v81, v81, v%d", 88+i, 88+i)
    e("ds_write_b128 v85, v[128:131] offset:%d", O_RHI)
    e("ds_write_b128 v85, v[132:135] offset:%d", O_RHI + 2048)
    e("ds_write_b128 v85, v[136:139] offset:%d", O_RLO)
    e("ds_write_b128 v85, v[140:143] offset:%d", O_RLO + 2048)
    for j in range(12):
        e("v_lshlrev_b32 v%d, 16, v%d", 160+2*j, 144+j)
        e("v_and_b32 v%d, 0xffff0000, v%d", 161+2*j, 144+j)
    e("s_waitcnt vmcnt(0)")
    for i in range(8):
        q = [184+8*c+i for c in range(8)]
        e("v_add_f32 v80, v%d, v%d", q[0], q[1])
        e("v_add_f32 v81, v%d, v%d", q[2], q[3])
        e("v_add_f32 v82, v%d, v%d", q[4], q[5])
        e("v_add_f32 v83, v%d, v%d", q[6], q[7])
        e("v_add_f32 v80, v80, v81")
        e("v_add_f32 v82, v82, v83")
        e("v_add_f32 v80, v80, v82")
        e("v_mov_b32 v81, 0x42800000")
        e("v_fma_f32 v80, v%d, v81, v80", 88+i)
        e("v_mul_f32 v80, 0x3b000000, v80")
        e("v_cvt_pk_bf16_f32 v82, v%d, v80", 72+i)
        e("v_lshlrev_b32 v%d, 16, v82", 96+i)
        e("v_and_b32 v80, 0xffff0000, v82")
        e("v_add_f32 v80, 0x3727c5ac, v80")
        e("v_cvt_pk_bf16_f32 v80, v80, v80")
        e("v_lshlrev_b32 v80, 16, v80")
        e("v_sqrt_f32 v80, v80")
        e("s_nop 0")
        e("v_cvt_pk_bf16_f32 v80, v80, v80")
        e("v_lshlrev_b32 v80, 16, v80")
        e("v_rcp_f32 v%d, v80", 104+i)
    e("v_lshlrev_b32 v12, 5, v0")
    e("s_nop 0")
    e("ds_write_b128 v12, v[96:99] offset:%d", L_MB)
    e("ds_write_b128 v12, v[100:103] offset:%d", L_MB+16)
    e("ds_write_b128 v12, v[104:107] offset:%d", L_RI)
    e("ds_write_b128 v12, v[108:111] offset:%d", L_RI+16)
    e("s_waitcnt lgkmcnt(0)")
    e("s_barrier")
    stamp(2)
    e("v_lshlrev_b32 v12, 6, v2")
    for j in range(6):
        e("ds_read_b128 v[%d:%d], v12 offset:%d", 64+4*j, 67+4*j, L_MB - 32 + 16*j)
    for j in range(6):
        e("ds_read_b128 v[%d:%d], v12 offset:%d", 88+4*j, 91+4*j, L_RI - 32 + 16*j)
    e("s_waitcnt lgkmcnt(0)")
    for j in range(12):
        a, b = 2*j, 2*j+1
        e("v_sub_f32 v13, v%d, v%d", 160+a, 64+a)
        e("v_sub_f32 v14, v%d, v%d", 160+b, 64+b)
        e("v_cvt_pk_bf16_f32 v13, v13, v14")
        e("v_lshlrev_b32 v14, 16, v13")
        e("v_mul_f32 v%d, v14, v%d", 112+a, 88+a)
        e("v_and_b32 v14, 0xffff0000, v13")
        e("v_mul_f32 v%d, v14, v%d", 112+b, 88+b)
    e("v_cmp_ne_u32 vcc, 0, v2")
    e("s_nop 1")
    for i in range(1,8):
        e("v_cndmask_b32 v%d, 0, v%d, vcc", 112+i, 112+i)
    for j in range(-2,8):
        e("v_cvt_pk_bf16_f32 v%d, v%d, v%d", 188+j, 120+2*j, 121+2*j)
    for j in range(-3,7):
        e("v_cvt_pk_bf16_f32 v%d, v%d, v%d", 201+j, 120+2*j, 121+2*j)
    for j in range(-4,6):
        e("v_cvt_pk_bf16_f32 v%d, v%d, v%d", 216+j, 121+2*j, 122+2*j)
    for j in range(-3,7):
        e("v_cvt_pk_bf16_f32 v%d, v%d, v%d", 229+j, 121+2*j, 122+2*j)
    e("v_lshrrev_b32 v12, 4, v2")
    e("v_mul_u32_u24 v12, 640, v12")
    e("v_and_b32 v13, 15, v2")
    e("v_lshl_add_u32 v12, v13, 5, v12")
    e("v_add_u32 v12, v7, v12")
    for rho in range(8):
        sh = 7 - rho
        if sh % 2 == 0:
            j0 = -(sh//2); src = (188 + j0) if j0 % 2 == 0 else (201 + j0)
        else:
            j0 = -((sh+1)//2); src = (216 + j0) if j0 % 2 == 0 else (229 + j0)
        assert src % 2 == 0
        off = O_U + rho*CSTR
        e("ds_write_b128 v12, v[%d:%d] offset:%d", src, src+3, off)
        e("ds_write_b128 v12, v[%d:%d] offset:%d", src+4, src+7, off+16)
    e("s_waitcnt lgkmcnt(0)")
    e("s_barrier")
    stamp(3)
    e("v_and_b32 v12, 31, v0")
    e("v_bfe_u32 v13, v0, 5, 1")
    e("v_lshlrev_b32 v14, 4, v13")
    e("v_lshlrev_b32 v15, 4, v12")
    e("v_sub_u32 v15, v14, v15")
    e("v_add_u32 v15, v7, v15")
    e("v_add_u32 v112, %d, v15", 4080 - 3584)
    e("v_and_b32 v16, 7, v0")
    e("v_bfe_u32 v17, v0, 3, 2")
    e("v_mul_u32_u24 v16, %d, v16", CSTR)
    e("v_add_u32 v16, v7, v16")
    e("v_add_u32 v16, v14, v16")
    e("v_add_u32 v18, v7, v14")
    e("v_add_u32 v18, %d, v18", O_ZB - O_U)
    def baddr(dst, nt, delta):
        e("v_add_u32 v19, %d, v17", 4*nt - delta)
        e("v_mul_i32_i24 v20, 640, v19")
        e("v_add_u32 v20, v16, v20")
        e("v_cmp_gt_i32 vcc, 0, v19")
        e("s_nop 1")
        e("v_cndmask_b32 v%d, v20, v18, vcc", dst)
    e("v_bfe_u32 v21, v0, 6, 1")
    e("s_nop 0")
    e("v_readfirstlane_b32 s41, v21")
    for r in range(128,160):
        e("v_mov_b32 v%d, 0", r)
    e("s_cmp_eq_u32 s41, 1")
    e("s_cbranch_scc1 conv_waveB")
    def run(steps, regs_for_delta, tag):
        issued = []
        def issue(si):
            d,q,tiles = steps[si]
            st = si % 3
            offA = 512*(7-d) + 32*q
            e("ds_read_b128 v[%d:%d], v112 offset:%d", 64+16*st, 67+16*st, O_RHI + offA)
            e("ds_read_b128 v[%d:%d], v112 offset:%d", 68+16*st, 71+16*st, O_RLO + offA)
            issued.extend([si,si])
            for ti,nt in enumerate(tiles):
                e("ds_read_b128 v[%d:%d], v%d offset:%d", 72+16*st+4*ti, 75+16*st+4*ti, regs_for_delta[(nt,d)], O_U + 32*q)
                issued.append(si)
        n = len(steps)
        issue(0); issue(1)
        for si in range(n):
            if si+2 < n: issue(si+2)
            later = sum(1 for x in issued if x > si)
            e("s_waitcnt lgkmcnt(%d)", min(later,15))
            d,q,tiles = steps[si]
            st = si % 3
            for ti,nt in enumerate(tiles):
                acc = 128 + 16*nt
                e("v_mfma_f32_32x32x16_bf16 v[%d:%d], v[%d:%d], v[%d:%d], v[%d:%d]", acc, acc+15, 64+16*st, 67+16*st, 72+16*st+4*ti, 75+16*st+4*ti, acc, acc+15)
                e("v_mfma_f32_32x32x16_bf16 v[%d:%d], v[%d:%d], v[%d:%d], v[%d:%d]", acc, acc+15, 68+16*st, 71+16*st, 72+16*st+4*ti, 75+16*st+4*ti, acc, acc+15)
    regsA = {}
    rr = 114
    for d in range(4):
        baddr(rr, 0, d); regsA[(0,d)] = rr; rr += 1
    for d in range(2):
        baddr(rr, 1, d); regsA[(1,d)] = rr; rr += 1
    stepsA = [(d,q,[0,1] if d < 2 else [0]) for d in range(4) for q in range(16)]
    run(stepsA, regsA, "A")
    e("s_branch conv_loopdone")
    k.lab("conv_waveB")
    regsB = {}
    rr = 114
    for d in range(2,8):
        baddr(rr, 1, d); regsB[(1,d)] = rr; rr += 1
    stepsB = [(d,q,[1]) for d in range(2,8) for q in range(16)]
    run(stepsB, regsB, "B")
    k.lab("conv_loopdone")
    stamp(4)
    e("s_nop 7"); e("s_nop 7")
    e("s_barrier")
    e("v_and_b32 v12, 7, v0")
    e("v_bfe_u32 v13, v0, 3, 2")
    e("v_bfe_u32 v14, v0, 5, 1")
    e("v_mul_u32_u24 v13, 1056, v13")
    e("v_lshl_add_u32 v12, v12, 2, v13")
    e("v_lshl_add_u32 v12, v14, 7, v12")
    e("v_add_u32 v12, v7, v12")
    YA = 0; YB = 8704
    e("s_cmp_eq_u32 s41, 1")
    e("s_cbranch_scc1 conv_ywB")
    for nt in range(2):
        for r in range(16):
            off = YA + nt*4*1056 + 32*(8*(r//4) + r%4)
            e("ds_write_b32 v12, v%d offset:%d", 128+16*nt+r, off)
    e("s_branch conv_ywdone")
    k.lab("conv_ywB")
    for r in range(16):
        off = YB + 32*(8*(r//4) + r%4)
        e("ds_write_b32 v12, v%d offset:%d", 144+r, off)
    k.lab("conv_ywdone")
    e("s_waitcnt lgkmcnt(0)")
    e("s_barrier")
    stamp(5)
    e("v_lshrrev_b32 v13, 4, v2")
    e("v_lshlrev_b32 v12, 6, v2")
    e("v_lshl_add_u32 v12, v13, 5, v12")
    e("v_add_u32 v12, v7, v12")
    for j in range(4):
        e("ds_read_b128 v[%d:%d], v12 offset:%d", 64+4*j, 67+4*j, YA + 16*j)
    e("v_cmp_le_u32 vcc, 64, v2")
    e("v_mov_b32 v80, 0");
    for r in range(81,96): e("v_mov_b32 v%d, 0", r)
    e("s_and_saveexec_b64 s[42:43], vcc")
    e("s_cbranch_execz conv_noyb")
    for j in range(4):
        e("ds_read_b128 v[%d:%d], v12 offset:%d", 80+4*j, 83+4*j, YB - 4*1056 + 16*j)
    k.lab("conv_noyb")
    e("s_mov_b64 exec, s[42:43]")
    e("s_waitcnt lgkmcnt(0)")
    e("s_lshl_b32 s46, s21, 16")
    e("s_and_b32 s47, s21, 0xffff0000")
    e("v_mov_b32 v14, s46")
    e("v_mov_b32 v15, s47")
    e("v_cmp_eq_u32 vcc, 1, v1")
    e("s_nop 1")
    e("v_cndmask_b32 v96, v14, v15, vcc")
    for j in range(8):
        a,b = 2*j, 2*j+1
        e("v_add_f32 v13, v%d, v%d", 64+a, 80+a)
        e("v_add_f32 v14, v%d, v%d", 64+b, 80+b)
        e("v_cvt_pk_bf16_f32 v13, v13, v14")
        e("v_lshlrev_b32 v15, 16, v%d", 188+j)
        e("v_and_b32 v16, 0xffff0000, v%d", 188+j)
        e("v_mul_f32 v15, v15, v96")
        e("v_mul_f32 v16, v16, v96")
        e("v_cvt_pk_bf16_f32 v15, v15, v16")
        e("v_lshlrev_b32 v16, 16, v13")
        e("v_lshlrev_b32 v17, 16, v15")
        e("v_add_f32 v16, v16, v17")
        e("v_and_b32 v17, 0xffff0000, v13")
        e("v_and_b32 v18, 0xffff0000, v15")
        e("v_add_f32 v17, v17, v18")
        e("v_cvt_pk_bf16_f32 v16, v16, v17")
        e("v_lshlrev_b32 v17, 16, v16")
        e("v_add_f32 v17, v17, v%d", 168+a)
        e("v_and_b32 v18, 0xffff0000, v16")
        e("v_add_f32 v18, v18, v%d", 168+b)
        e("v_cvt_pk_bf16_f32 v%d, v17, v18", 100+j)
    e("v_lshlrev_b32 v12, 12, v3")
    e("v_lshl_add_u32 v12, v2, 5, v12")
    e("v_add_u32 v12, s23, v12")
    e("buffer_store_dwordx4 v[100:103], v12, s[28:31], 0 offen")
    e("buffer_store_dwordx4 v[104:107], v12, s[28:31], 0 offen offset:16")
    if STAMP:
        stamp(6)
        e("s_waitcnt lgkmcnt(0)")
        e("v_mov_b32 v20, 0x1C00000")
        e("s_lshl_b32 s3, s2, 6")
        e("v_add_u32 v20, s3, v20")
        e("v_cmp_eq_u32 vcc, 0, v0")
        e("s_and_saveexec_b64 s[42:43], vcc")
        for i in range(7):
            e("v_mov_b32 v21, s%d", 64+2*i)
            e("buffer_store_dword v21, v20, s[28:31], 0 offen offset:%d", 4*i)
    k.lab("conv_done")
    e("s_endpgm")
    return [("conva_kernel", 248), ("convb_kernel", 248)]
```

```python
from gen import *
import os

PITCH = 192
G1_SCR = 0
TB = 9216
G1_LDS = TB + 512*PITCH
K1 = "0xc0135761"
K2 = "0xbdd2d3e8"

def f32hex(x):
    import struct
    return "0x%08x" % struct.unpack("<I", struct.pack("<f", x))[0]

STAMP1 = os.environ.get("STAMP1")
def gen_gemm1(k):
    e = k.e
    def stamp(i):
        if STAMP1:
            e("s_memtime s[%d:%d]", 64+2*i, 65+2*i)
    kernel_header(k, "gemm1a_kernel")
    e("s_mov_b32 s20, 0x%x", WS_X1T)
    e("s_branch g1_common")
    kernel_header(k, "gemm1b_kernel")
    e("s_mov_b32 s20, 0x%x", WS_X3T)
    k.lab("g1_common")
    e("s_cmp_ge_u32 s2, 224")
    e("s_cbranch_scc1 g1_done")
    stamp(0)
    e("s_load_dwordx2 s[6:7], s[0:1], 120")
    e("s_and_b32 s21, s2, 31")
    e("s_lshr_b32 s22, s2, 5")
    e("v_lshrrev_b32 v1, 3, v0")
    e("v_and_b32 v2, 7, v0")
    e("v_lshlrev_b32 v3, 12, v1")
    e("v_lshl_add_u32 v3, v2, 4, v3")
    e("s_lshl_b32 s3, s21, 7")
    e("v_add_u32 v3, s3, v3")
    e("v_and_b32 v4, 63, v0")
    e("v_lshrrev_b32 v5, 6, v0")
    e("s_lshl_b32 s3, s22, 3")
    e("v_lshl_add_u32 v6, v5, 1, s3")
    e("v_lshlrev_b32 v6, 15, v6")
    e("v_lshl_add_u32 v6, v4, 4, v6")
    e("s_waitcnt lgkmcnt(0)")
    k.srd(28, 6, 0x1E00000 if STAMP1 else WS_USED)
    e("s_add_u32 s24, s6, s20")
    e("s_addc_u32 s25, s7, 0")
    e("s_mov_b32 s26, 0x200000")
    e("s_mov_b32 s27, 0x00020000")
    for i in range(16):
        e("s_mov_b32 s40, 0x%x", i*131072)
        e("buffer_load_dwordx4 v[%d:%d], v3, s[24:27], s40 offen", 192+4*i, 195+4*i)
    e("s_mov_b32 s48, 0x%x", WS_WGP)
    e("s_mov_b32 s49, 0x%x", WS_WGP + 32768)
    e("s_mov_b32 s50, 0x%x", WS_WUP)
    e("s_mov_b32 s51, 0x%x", WS_WUP + 32768)
    def wload(stage):
        b = 64 + 16*stage
        for q in range(4):
            e("buffer_load_dwordx4 v[%d:%d], v6, s[28:31], s%d offen", b+4*q, b+4*q+3, 48+q)
        for q in range(4):
            e("s_add_u32 s%d, s%d, 1024", 48+q, 48+q)
    for st in range(4):
        wload(st)
    stamp(1)
    e("s_waitcnt vmcnt(16)")
    stamp(2)
    for j in range(64):
        e("v_lshlrev_b32 v%d, 16, v%d", 128+2*j, 192+j)
        e("v_and_b32 v%d, 0xffff0000, v%d", 129+2*j, 192+j)
    for j in range(4):
        e("v_pk_add_f32 v[%d:%d], v[%d:%d], v[%d:%d]", 32+2*j, 33+2*j, 128+2*j, 129+2*j, 136+2*j, 137+2*j)
    for i in range(2,16):
        for j in range(4):
            e("v_pk_add_f32 v[%d:%d], v[%d:%d], v[%d:%d]", 32+2*j, 33+2*j, 32+2*j, 33+2*j, 128+8*i+2*j, 129+8*i+2*j)
    e("v_lshlrev_b32 v7, 5, v0")
    e("ds_write_b128 v7, v[32:35] offset:%d", G1_SCR)
    e("ds_write_b128 v7, v[36:39] offset:%d", G1_SCR+16)
    e("s_waitcnt lgkmcnt(0)")
    e("s_barrier")
    e("v_lshlrev_b32 v8, 2, v0")
    e("v_cmp_gt_u32 vcc, 64, v0")
    e("s_and_saveexec_b64 s[42:43], vcc")
    for r in range(32):
        e("ds_read_b32 v%d, v8 offset:%d", 40+r if r < 24 else 8+r, G1_SCR + 256*r)
    e("s_waitcnt lgkmcnt(0)")
    def regs32(r): return 40+r if r < 24 else 8+r
    for half in (16,8,4,2,1):
        for r in range(half):
            e("v_add_f32 v%d, v%d, v%d", regs32(r), regs32(r), regs32(r+half))
    e("v_mul_f32 v40, 0x3b000000, v40")
    e("ds_write_b32 v8, v40 offset:%d", G1_SCR + 8192)
    e("s_mov_b64 exec, s[42:43]")
    e("s_waitcnt lgkmcnt(0)")
    e("s_barrier")
    e("v_lshlrev_b32 v9, 5, v2")
    e("ds_read_b128 v[40:43], v9 offset:%d", G1_SCR + 8192)
    e("ds_read_b128 v[44:47], v9 offset:%d", G1_SCR + 8192 + 16)
    e("s_waitcnt lgkmcnt(0)")
    for j in range(4):
        e("v_mov_b32 v%d, 0", 32+2*j); e("v_mov_b32 v%d, 0", 33+2*j)
    for i in range(16):
        for j in range(4):
            e("v_pk_add_f32 v[48:49], v[%d:%d], v[%d:%d] neg_lo:[0,1] neg_hi:[0,1]", 128+8*i+2*j, 129+8*i+2*j, 40+2*j, 41+2*j)
            e("v_pk_fma_f32 v[%d:%d], v[48:49], v[48:49], v[%d:%d]", 32+2*j, 33+2*j, 32+2*j, 33+2*j)
    e("ds_write_b128 v7, v[32:35] offset:%d", G1_SCR)
    e("ds_write_b128 v7, v[36:39] offset:%d", G1_SCR+16)
    e("s_waitcnt lgkmcnt(0)")
    e("s_barrier")
    e("s_and_saveexec_b64 s[42:43], vcc")
    for r in range(32):
        e("ds_read_b32 v%d, v8 offset:%d", regs32(r), G1_SCR + 256*r)
    e("ds_read_b32 v10, v8 offset:%d", G1_SCR + 8192)
    e("s_waitcnt lgkmcnt(0)")
    for half in (16,8,4,2,1):
        for r in range(half):
            e("v_add_f32 v%d, v%d, v%d", regs32(r), regs32(r), regs32(r+half))
    e("v_mul_f32 v40, 0x3b000000, v40")
    e("v_cvt_pk_bf16_f32 v41, v10, v40")
    e("v_lshlrev_b32 v42, 16, v41")
    e("v_and_b32 v40, 0xffff0000, v41")
    e("v_add_f32 v40, 0x3727c5ac, v40")
    e("v_cvt_pk_bf16_f32 v40, v40, v40")
    e("v_lshlrev_b32 v40, 16, v40")
    e("v_sqrt_f32 v40, v40")
    e("s_nop 0")
    e("v_cvt_pk_bf16_f32 v40, v40, v40")
    e("v_lshlrev_b32 v40, 16, v40")
    e("v_rcp_f32 v43, v40")
    e("s_nop 0")
    e("ds_write_b32 v8, v42 offset:%d", G1_SCR + 8192 + 256)
    e("ds_write_b32 v8, v43 offset:%d", G1_SCR + 8192 + 512)
    e("s_mov_b64 exec, s[42:43]")
    e("s_waitcnt lgkmcnt(0)")
    e("s_barrier")
    e("ds_read_b128 v[32:35], v9 offset:%d", G1_SCR + 8192 + 256)
    e("ds_read_b128 v[36:39], v9 offset:%d", G1_SCR + 8192 + 256 + 16)
    e("ds_read_b128 v[40:43], v9 offset:%d", G1_SCR + 8192 + 512)
    e("ds_read_b128 v[44:47], v9 offset:%d", G1_SCR + 8192 + 512 + 16)
    stamp(3)
    e("v_mul_u32_u24 v10, %d, v1", PITCH)
    e("v_lshl_add_u32 v10, v2, 4, v10")
    e("v_add_u32 v10, %d, v10", TB)
    e("v_add_u32 v15, %d, v10", 8*32*PITCH)
    e("s_waitcnt lgkmcnt(0)")
    for i in range(16):
        for j in range(4):
            a = 128+8*i+2*j
            e("v_pk_add_f32 v[48:49], v[%d:%d], v[%d:%d] neg_lo:[0,1] neg_hi:[0,1]", a, a+1, 32+2*j, 33+2*j)
            e("v_cvt_pk_bf16_f32 v50, v48, v49")
            e("v_lshlrev_b32 v48, 16, v50")
            e("v_and_b32 v49, 0xffff0000, v50")
            e("v_pk_mul_f32 v[48:49], v[48:49], v[%d:%d]", 40+2*j, 41+2*j)
            e("v_cvt_pk_bf16_f32 v%d, v48, v49", 52+j)
        e("ds_write_b128 v%d, v[52:55] offset:%d", 10 if i < 8 else 15, (i%8)*32*PITCH)
        if i < 15:
            e("s_nop 0")
    for r in range(128,256):
        e("v_mov_b32 v%d, 0", r)
    e("v_lshrrev_b32 v11, 5, v4")
    e("v_lshlrev_b32 v11, 3, v11")
    e("v_bfe_u32 v12, v4, 2, 2")
    e("v_add_u32 v11, v11, v12")
    e("v_mul_u32_u24 v11, %d, v11", PITCH)
    e("v_bfe_u32 v12, v4, 4, 1")
    e("v_lshl_add_u32 v11, v12, 5, v11")
    e("v_and_b32 v12, 3, v4")
    e("v_lshl_add_u32 v11, v12, 3, v11")
    e("v_add_u32 v11, %d, v11", TB)
    e("v_add_u32 v12, %d, v11", 16*16*PITCH)
    e("s_waitcnt lgkmcnt(0)")
    e("s_barrier")
    def uread(ks):
        p = ks % 2
        base = 11 if ks < 16 else 12
        o = (ks % 16)*16*PITCH
        for tt in range(2):
            for h in range(2):
                r = 48 + 8*p + 4*tt + 2*h
                e("ds_read_b64_tr_b16 v[%d:%d], v%d offset:%d", r, r+1, base, o + h*4*PITCH + tt*64)
    stamp(4)
    uread(0)
    for ks in range(32):
        if ks < 31:
            uread(ks+1)
        st = ks % 4
        ahead = min(3, 31-ks)
        e("s_waitcnt vmcnt(%d) lgkmcnt(%d)", 4*ahead, 4 if ks < 31 else 0)
        p = ks % 2
        for q in range(4):
            for tt in range(2):
                acc = 128 + 64*(q//2) + 16*(2*(q%2)+tt)
                w = 64 + 16*st + 4*q
                u = 48 + 8*p + 4*tt
                e("v_mfma_f32_32x32x16_bf16 v[%d:%d], v[%d:%d], v[%d:%d], v[%d:%d]", acc, acc+15, w, w+3, u, u+3, acc, acc+15)
        if ks + 4 < 32:
            wload(st)
    stamp(5)
    e("v_and_b32 v13, 31, v4")
    e("v_lshlrev_b32 v13, 4, v13")
    e("v_lshrrev_b32 v14, 5, v4")
    e("v_lshl_add_u32 v13, v14, 3, v13")
    e("s_mul_i32 s3, s21, 224")
    e("s_lshl_b32 s4, s22, 4")
    e("s_add_u32 s3, s3, s4")
    e("v_lshlrev_b32 v14, 2, v5")
    e("v_add_u32 v14, s3, v14")
    e("v_lshl_add_u32 v13, v14, 10, v13")
    e("v_add_u32 v13, 0x%x, v13", WS_H)
    e("v_mov_b32 v16, %s", K1)
    e("s_mov_b32 s44, %s", K2)
    e("s_nop 7"); e("s_nop 7")
    for tt in range(2):
        e("s_mov_b32 s40, %d", tt*112*1024)
        for ft in range(2):
            G = 128 + 16*(2*ft+tt); U = G + 64
            for a in range(4):
                for pr in range(2):
                    r0 = 4*a + 2*pr
                    e("v_cvt_pk_bf16_f32 v20, v%d, v%d", G+r0, G+r0+1)
                    e("v_cvt_pk_bf16_f32 v21, v%d, v%d", U+r0, U+r0+1)
                    e("v_lshlrev_b32 v22, 16, v20")
                    e("v_and_b32 v23, 0xffff0000, v20")
                    e("v_mul_f32 v24, v22, v22")
                    e("v_mul_f32 v25, v23, v23")
                    e("v_fma_f32 v24, v24, s44, v16")
                    e("v_fma_f32 v25, v25, s44, v16")
                    e("v_mul_f32 v24, v24, v22")
                    e("v_mul_f32 v25, v25, v23")
                    e("v_exp_f32 v24, v24")
                    e("v_exp_f32 v25, v25")
                    e("s_nop 0")
                    e("v_add_f32 v24, 1.0, v24")
                    e("v_add_f32 v25, 1.0, v25")
                    e("v_rcp_f32 v24, v24")
                    e("v_rcp_f32 v25, v25")
                    e("s_nop 0")
                    e("v_mul_f32 v24, v24, v22")
                    e("v_mul_f32 v25, v25, v23")
                    e("v_cvt_pk_bf16_f32 v24, v24, v25")
                    e("v_lshlrev_b32 v22, 16, v24")
                    e("v_and_b32 v23, 0xffff0000, v24")
                    e("v_lshlrev_b32 v24, 16, v21")
                    e("v_and_b32 v25, 0xffff0000, v21")
                    e("v_mul_f32 v22, v22, v24")
                    e("v_mul_f32 v23, v23, v25")
                    e("v_cvt_pk_bf16_f32 v%d, v22, v23", 26+2*(a%2)+pr)
                e("buffer_store_dwordx2 v[%d:%d], v13, s[28:31], s40 offen offset:%d", 26+2*(a%2), 27+2*(a%2), (2*ft + a//2)*1024 + (a%2)*512)
    if STAMP1:
        stamp(6)
        e("s_waitcnt lgkmcnt(0)")
        e("v_mov_b32 v20, 0x1C00000")
        e("s_lshl_b32 s3, s2, 6")
        e("v_add_u32 v20, s3, v20")
        e("v_cmp_eq_u32 vcc, 0, v0")
        e("s_and_saveexec_b64 s[42:43], vcc")
        for i in range(7):
            e("v_mov_b32 v21, s%d", 64+2*i)
            e("buffer_store_dword v21, v20, s[28:31], 0 offen offset:%d", 4*i)
    k.lab("g1_done")
    e("s_endpgm")
    return [("gemm1a_kernel", 256), ("gemm1b_kernel", 256)]
```

```python
import sys, re

NAME = "interleave_layers__ssm_conv_s4__geglu_ffn__prompt"
WS_X1T=0x0000000; WS_X2T=0x0200000; WS_X3T=0x0400000; WS_H=0x0800000
WS_X0T=0x0600000
WS_ST1=0x1000000; WS_ST3=0x1020000; WS_K=0x1100000
WS_WGP=0x1600000; WS_WUP=0x1800000; WS_WDP=0x1A00000; WS_USED=0x1C00000

class K:
    def __init__(s):
        s.L = []
    def e(s, fmt, *a):
        t = (fmt % a if a else fmt)
        m = re.search(r"offset:(\d+)", t)
        if m:
            lim = 4095 if t.startswith("buffer_") else 65535
            assert int(m.group(1)) <= lim, t
        s.L.append("    " + t)
    def lab(s, n):
        s.L.append(n + ":")
    def c(s, t):
        s.L.append("    ; " + t)
    def srd(s, d, p, nbytes):
        s.e("s_mov_b32 s%d, s%d", d, p)
        s.e("s_mov_b32 s%d, s%d", d+1, p+1)
        s.e("s_mov_b32 s%d, 0x%x", d+2, nbytes)
        s.e("s_mov_b32 s%d, 0x00020000", d+3)
    def text(s):
        return "\n".join(s.L) + "\n"

LOG2E = "0x3fb8aa3b"
INV2PI = "0.15915494"

def kernel_header(k, name):
    k.L.append(".globl %s" % name)
    k.L.append(".p2align 8")
    k.L.append(".type %s,@function" % name)
    k.lab(name)

def descriptor(name, vgpr, sgpr=102):
    acc = (vgpr + 3)//4*4
    return """.amdhsa_kernel %s
  .amdhsa_next_free_vgpr %d
  .amdhsa_next_free_sgpr %d
  .amdhsa_accum_offset %d
  .amdhsa_group_segment_fixed_size 0
  .amdhsa_kernarg_size 128
  .amdhsa_user_sgpr_count 2
  .amdhsa_user_sgpr_kernarg_segment_ptr 1
  .amdhsa_system_sgpr_workgroup_id_x 1
.end_amdhsa_kernel
""" % (name, vgpr, sgpr, acc)

def transpose8(k, src, dst):
    k.e("s_mov_b32 s62, 0x05040100")
    k.e("s_mov_b32 s63, 0x07060302")
    for c in range(8):
        for p in range(4):
            k.e("v_perm_b32 v%d, v%d, v%d, s%d", dst+4*c+p, src+4*(2*p+1)+c//2, src+4*(2*p)+c//2, 62 + (c%2))

def gen_kgen(k):
    name = "kgen_kernel"
    kernel_header(k, name)
    e = k.e
    e("s_cmp_ge_u32 s2, 744")
    e("s_cbranch_scc1 kg_done")
    e("s_add_u32 s3, s2, 512")
    e("s_sub_u32 s2, s2, 232")
    e("s_cselect_b32 s2, s3, s2")
    e("s_load_dwordx16 s[4:19], s[0:1], 0")
    e("s_load_dwordx2 s[20:21], s[0:1], 120")
    e("s_waitcnt lgkmcnt(0)")
    k.srd(52, 20, WS_USED)
    e("s_cmp_ge_u32 s2, 512")
    e("s_cbranch_scc1 kg_stats")
    for i,(d,p) in enumerate([(24,6),(28,8),(32,10),(36,12),(40,14),(44,16)]):
        k.srd(d, p, 512*128*2)
    k.srd(48, 18, 1024)
    k.c("phase 1: per-mode parameters -> LDS")
    e("v_and_b32 v1, 127, v0")
    e("s_lshl_b32 s3, s2, 8")
    e("v_lshl_add_u32 v2, v1, 1, s3")
    e("buffer_load_ushort v4, v2, s[24:27], 0 offen")
    e("buffer_load_ushort v5, v2, s[28:31], 0 offen")
    e("buffer_load_ushort v6, v2, s[32:35], 0 offen")
    e("buffer_load_ushort v7, v2, s[36:39], 0 offen")
    e("buffer_load_ushort v8, v2, s[40:43], 0 offen")
    e("buffer_load_ushort v9, v2, s[44:47], 0 offen")
    e("s_lshl_b32 s3, s2, 1")
    e("v_mov_b32 v10, s3")
    e("buffer_load_ushort v11, v10, s[48:51], 0 offen")
    e("s_waitcnt vmcnt(0)")
    for r in (4,5,6,7,8,9,11):
        e("v_lshlrev_b32 v%d, 16, v%d", r, r)
    e("v_mul_f32 v12, %s, v11", LOG2E)
    e("v_exp_f32 v12, v12")
    e("s_nop 0")
    e("v_cvt_pk_bf16_f32 v12, v12, v12")
    e("v_lshlrev_b32 v12, 16, v12")
    e("v_mul_f32 v20, v12, v4")
    e("v_mul_f32 v20, %s, v20", LOG2E)
    e("v_mul_f32 v21, v12, v5")
    e("v_mul_f32 v21, %s, v21", INV2PI)
    e("v_mul_f32 v15, v12, v6")
    e("v_mul_f32 v16, v12, v7")
    e("v_mul_f32 v22, v8, v15")
    e("v_fma_f32 v22, -v9, v16, v22")
    e("v_mul_f32 v23, v8, v16")
    e("v_fma_f32 v23, v9, v15, v23")
    e("v_lshlrev_b32 v3, 4, v1")
    e("ds_write_b128 v3, v[20:23]")
    e("s_waitcnt lgkmcnt(0)")
    e("s_barrier")
    k.c("phase 2: per-wave segment tile via f32 MFMA")
    e("v_lshrrev_b32 v24, 6, v0")
    e("s_nop 0")
    e("v_readfirstlane_b32 s56, v24")
    e("s_lshl_b32 s57, 1, s56")
    e("s_lshl_b32 s58, 128, s56")
    e("s_cmp_eq_u32 s56, 0")
    e("s_cselect_b32 s58, 0, s58")
    e("s_lshl_b32 s59, s57, 4")
    e("v_and_b32 v25, 15, v0")
    e("v_bfe_u32 v26, v0, 4, 2")
    e("v_bfe_u32 v27, v0, 5, 1")
    e("v_and_b32 v28, 31, v0")
    e("v_cmp_eq_u32 vcc, 0, v27")
    e("s_mov_b64 s[60:61], vcc")
    e("v_mov_b32 v29, s58"); e("v_mov_b32 v30, s59"); e("v_mov_b32 v31, s57")
    e("v_cndmask_b32 v29, 0, v29, vcc")
    e("v_cndmask_b32 v30, v31, v30, vcc")
    e("v_cvt_f32_u32 v29, v29")
    e("v_cvt_f32_u32 v30, v30")
    e("s_mul_i32 s60, s56, 10240") if False else None
    e("v_mul_u32_u24 v36, 10240, v24")
    e("v_add_u32 v36, 8192, v36")
    e("v_mov_b32 v37, v36")
    e("v_mul_u32_u24 v38, 5120, v27")
    e("v_add_u32 v36, v36, v38")
    e("v_mul_u32_u24 v38, 80, v28")
    e("v_add_u32 v36, v36, v38")
    e("v_mul_u32_u24 v38, 80, v26")
    e("v_lshl_add_u32 v38, v25, 2, v38")
    e("v_add_u32 v37, v37, v38")
    e("v_lshlrev_b32 v39, 4, v28")
    for r in range(32,36):
        e("v_mov_b32 v%d, 0", r)
    for p in range(4):
        e("ds_read_b128 v[40:43], v39 offset:%d", p*512)
        e("s_waitcnt lgkmcnt(0)")
        e("v_mul_f32 v44, v40, v29")
        e("v_mul_f32 v45, v41, v29")
        e("v_mul_f32 v46, v40, v30")
        e("v_mul_f32 v47, v41, v30")
        e("v_fract_f32 v45, v45")
        e("v_fract_f32 v47, v47")
        e("v_exp_f32 v44, v44")
        e("v_exp_f32 v46, v46")
        e("v_sin_f32 v48, v45")
        e("v_cos_f32 v49, v45")
        e("v_sin_f32 v50, v47")
        e("v_cos_f32 v51, v47")
        e("s_nop 0")
        e("v_mul_f32 v52, v44, v49")
        e("v_mul_f32 v53, v44, v48")
        e("v_mul_f32 v54, v46, v51")
        e("v_mul_f32 v55, v46, v50")
        e("v_sub_f32 v56, 0, v55")
        e("v_cndmask_b32 v55, v55, v56, vcc")
        e("v_cndmask_b32 v42, 1.0, v42, vcc")
        e("v_cndmask_b32 v43, 0, v43, vcc")
        e("v_mul_f32 v64, v42, v52")
        e("v_fma_f32 v64, -v43, v53, v64")
        e("v_mul_f32 v80, v42, v53")
        e("v_fma_f32 v80, v43, v52, v80")
        e("v_sub_f32 v56, 0, v80")
        e("v_cndmask_b32 v80, v80, v56, vcc")
        for i in range(15):
            e("v_mul_f32 v%d, v%d, v54", 65+i, 64+i)
            e("v_fma_f32 v%d, -v%d, v55, v%d", 65+i, 80+i, 65+i)
            e("v_mul_f32 v%d, v%d, v54", 81+i, 80+i)
            e("v_fma_f32 v%d, v%d, v55, v%d", 81+i, 64+i, 81+i)
        for j in range(4):
            e("ds_write_b128 v36, v[%d:%d] offset:%d", 64+4*j, 67+4*j, 16*j)
            e("ds_write_b128 v36, v[%d:%d] offset:%d", 80+4*j, 83+4*j, 2560+16*j)
        e("s_waitcnt lgkmcnt(0)")
        for q in range(8):
            o = q*320
            for t,arr in enumerate((0,1,2,3)):
                e("ds_read_b32 v%d, v37 offset:%d", 96+4*q+t, o + arr*2560)
        for q in range(8):
            e("s_waitcnt lgkmcnt(%d)", min(15, 4*(7-q)))
            e("v_mfma_f32_16x16x4_f32 v[32:35], v%d, v%d, v[32:35]", 96+4*q, 98+4*q)
            e("v_mfma_f32_16x16x4_f32 v[32:35], v%d, v%d, v[32:35]", 97+4*q, 99+4*q)
    k.c("phase 3: table to LDS")
    e("v_lshrrev_b32 v60, 4, v0")
    e("v_and_b32 v60, 3, v60")
    e("v_lshlrev_b32 v60, 8, v60")
    e("v_lshl_add_u32 v60, v25, 2, v60")
    e("s_lshl_b32 s60, s56, 10")
    e("v_add_u32 v60, s60, v60")
    e("s_nop 7")
    e("s_nop 3")
    for r in range(4):
        e("ds_write_b32 v60, v%d offset:%d", 32+r, 2048 + 64*r)
    e("s_waitcnt lgkmcnt(0)")
    e("s_barrier")
    k.c("phase 4: expand to reversed hi/lo tables")
    e("v_lshlrev_b32 v61, 3, v0")
    e("v_sub_u32 v61, 2047, v61")
    for ee in range(8):
        e("v_subrev_u32 v62, %d, v61", ee)
        e("v_cvt_f32_u32 v62, v62")
        e("s_nop 0")
        e("v_cvt_pk_bf16_f32 v62, v62, v62")
        e("v_lshlrev_b32 v62, 16, v62")
        e("v_cvt_u32_f32 v62, v62")
        e("v_mov_b32 v63, 0")
        for thr in (256,512,1024):
            e("v_cmp_le_u32 vcc, %d, v62", thr)
            e("s_nop 1")
            e("v_addc_co_u32 v63, vcc, 0, v63, vcc")
        e("v_lshrrev_b32 v62, v63, v62")
        e("v_min_u32 v64, 1, v63")
        e("v_lshlrev_b32 v64, 7, v64")
        e("v_sub_u32 v62, v62, v64")
        e("v_lshl_add_u32 v62, v63, 8, v62")
        e("v_lshlrev_b32 v62, 2, v62")
        e("ds_read_b32 v%d, v62 offset:2048", 40+ee)
    e("s_waitcnt lgkmcnt(0)")
    for j in range(4):
        a,b = 40+2*j, 41+2*j
        e("v_cvt_pk_bf16_f32 v%d, v%d, v%d", 32+j, a, b)
        e("v_lshlrev_b32 v62, 16, v%d", 32+j)
        e("v_and_b32 v63, 0xffff0000, v%d", 32+j)
        e("v_sub_f32 v62, v%d, v62", a)
        e("v_sub_f32 v63, v%d, v63", b)
        e("v_cvt_pk_bf16_f32 v%d, v62, v63", 36+j)
    e("s_lshl_b32 s3, s2, 13")
    e("s_add_u32 s3, s3, 0x%x", WS_K)
    e("v_lshl_add_u32 v61, v0, 4, s3")
    e("buffer_store_dwordx4 v[32:35], v61, s[52:55], 0 offen")
    e("v_add_u32 v61, 4096, v61")
    e("buffer_store_dwordx4 v[36:39], v61, s[52:55], 0 offen")
    e("s_branch kg_done")
    k.lab("kg_stats")
    e("s_cmp_ge_u32 s2, 576")
    e("s_cbranch_scc1 kg_pack")
    k.srd(24, 4, 2*1024*1024)
    e("s_sub_u32 s3, s2, 512")
    e("s_lshl_b32 s3, s3, 5")
    e("v_lshrrev_b32 v1, 6, v0")
    e("v_lshlrev_b32 v1, 3, v1")
    e("v_add_u32 v1, s3, v1")
    e("v_and_b32 v2, 63, v0")
    e("v_lshlrev_b32 v3, 10, v1")
    e("v_lshl_add_u32 v3, v2, 4, v3")
    for r in range(8):
        e("s_mov_b32 s4, %d", 1024*r)
        e("buffer_load_dwordx4 v[%d:%d], v3, s[24:27], s4 offen", 4+4*r, 7+4*r)
    e("v_lshrrev_b32 v40, 3, v2")
    e("v_lshlrev_b32 v40, 13, v40")
    e("v_lshl_add_u32 v40, v1, 2, v40")
    e("v_add_u32 v40, 0x%x, v40", WS_ST1)
    e("v_and_b32 v41, 7, v2")
    e("v_cmp_eq_u32 vcc, 0, v41")
    e("s_mov_b64 s[60:61], vcc")
    e("v_lshlrev_b32 v42, 15, v2")
    e("v_lshl_add_u32 v42, v1, 1, v42")
    e("v_add_u32 v42, 0x%x, v42", WS_X0T)
    e("s_waitcnt vmcnt(0)")
    transpose8(k, 4, 64)
    for i in range(8):
        e("s_mov_b32 s4, %d", 4096*i)
        e("buffer_store_dwordx4 v[%d:%d], v42, s[52:55], s4 offen", 64+4*i, 67+4*i)
    def bfly(v, tmp):
        for ctl in ("quad_perm:[1,0,3,2]","quad_perm:[2,3,0,1]","row_half_mirror"):
            e("s_nop 1")
            e("v_add_f32_dpp v%d, v%d, v%d %s row_mask:0xf bank_mask:0xf", v, v, v, ctl)
    for r in range(8):
        b = 4+4*r
        for j in range(4):
            e("v_lshlrev_b32 v%d, 16, v%d", 44+2*j, b+j)
            e("v_and_b32 v%d, 0xffff0000, v%d", 45+2*j, b+j)
        e("v_add_f32 v52, v44, v45")
        for j in range(2,8):
            e("v_add_f32 v52, v52, v%d", 44+j)
        bfly(52, 53)
        e("v_mul_f32 v52, 0x3c800000, v52")
        for j in range(8):
            e("v_sub_f32 v%d, v%d, v52", 44+j, 44+j)
        e("v_mul_f32 v53, v44, v44")
        for j in range(1,8):
            e("v_fma_f32 v53, v%d, v%d, v53", 44+j, 44+j)
        bfly(53, 54)
        e("s_mov_b64 exec, s[60:61]")
        e("buffer_store_dword v52, v40, s[52:55], 0 offen offset:%d", 4*r)
        e("v_add_u32 v54, 0x10000, v40")
        e("buffer_store_dword v53, v54, s[52:55], 0 offen offset:%d", 4*r)
        e("s_mov_b64 exec, -1")
    e("s_branch kg_done")
    k.lab("kg_pack")
    e("s_load_dwordx4 s[4:7], s[0:1], 80")
    e("s_load_dwordx2 s[8:9], s[0:1], 96")
    e("s_sub_u32 s3, s2, 576")
    e("s_waitcnt lgkmcnt(0)")
    e("s_mov_b32 s10, 0x%x", WS_WGP)
    e("s_mov_b32 s11, 12")
    e("s_cmp_lt_u32 s3, 56")
    e("s_cbranch_scc1 kg_pk_sel")
    e("s_sub_u32 s3, s3, 56")
    e("s_mov_b32 s4, s6"); e("s_mov_b32 s5, s7")
    e("s_mov_b32 s10, 0x%x", WS_WUP)
    e("s_cmp_lt_u32 s3, 56")
    e("s_cbranch_scc1 kg_pk_sel")
    e("s_sub_u32 s3, s3, 56")
    e("s_mov_b32 s4, s8"); e("s_mov_b32 s5, s9")
    e("s_mov_b32 s10, 0x%x", WS_WDP)
    e("s_mov_b32 s12, 1024"); e("s_mov_b32 s13, 112")
    e("s_and_b32 s14, s3, 1"); e("s_lshr_b32 s15, s3, 1")
    e("s_branch kg_pk_go")
    k.lab("kg_pk_sel")
    e("s_mov_b32 s12, 3584"); e("s_mov_b32 s13, 32")
    e("s_mul_i32 s15, s3, 37"); e("s_lshr_b32 s15, s15, 8")
    e("s_mul_i32 s14, s15, 7"); e("s_sub_u32 s14, s3, s14")
    k.lab("kg_pk_go")
    k.srd(24, 4, 512*1792*2)
    e("v_and_b32 v1, 31, v0")
    e("s_lshl_b32 s14, s14, 5")
    e("v_add_u32 v1, s14, v1")
    e("v_lshrrev_b32 v2, 5, v0")
    e("s_lshl_b32 s15, s15, 3")
    e("v_add_u32 v2, s15, v2")
    e("v_lshlrev_b32 v3, 3, v2")
    e("v_mul_lo_u32 v3, v3, s12")
    e("v_lshl_add_u32 v3, v1, 4, v3")
    e("s_mov_b32 s16, 0")
    for r in range(8):
        e("buffer_load_dwordx4 v[%d:%d], v3, s[24:27], s16 offen", 4+4*r, 7+4*r)
        e("s_add_u32 s16, s16, s12")
    e("v_lshrrev_b32 v40, 2, v1")
    e("v_mul_lo_u32 v40, v40, s13")
    e("v_lshrrev_b32 v41, 1, v2")
    e("v_add_u32 v40, v40, v41")
    e("v_lshlrev_b32 v40, 6, v40")
    e("v_and_b32 v41, 3, v1")
    e("v_lshl_add_u32 v40, v41, 3, v40")
    e("v_and_b32 v41, 1, v2")
    e("v_lshl_add_u32 v40, v41, 5, v40")
    e("v_lshlrev_b32 v40, 4, v40")
    e("v_add_u32 v40, s10, v40")
    e("s_waitcnt vmcnt(0)")
    transpose8(k, 4, 64)
    for i in range(8):
        e("buffer_store_dwordx4 v[%d:%d], v40, s[52:55], 0 offen offset:%d", 64+4*i, 67+4*i, 16*i)
    k.lab("kg_done")
    e("s_endpgm")
    return name, 128

def main():
    import conv, gemm1, gemm2
    k = K()
    kernels = []
    kernels.append(gen_kgen(k))
    kernels.extend(conv.gen_conv(k))
    kernels.extend(gemm1.gen_gemm1(k))
    kernels.extend(gemm2.gen_gemm2(k))
    launches = [("kgen_kernel", (744,1,1), (256,1,1), 49152),
                ("conva_kernel", (256,1,1), (256,1,1), conv.CONV_LDS),
                ("gemm1a_kernel", (224,1,1), (256,1,1), gemm1.G1_LDS),
                ("gemm2a_kernel", (256,1,1), (256,1,1), gemm2.G2_LDS),
                ("convb_kernel", (256,1,1), (256,1,1), conv.CONV_LDS),
                ("gemm1b_kernel", (224,1,1), (256,1,1), gemm1.G1_LDS),
                ("gemm2b_kernel", (256,1,1), (256,1,1), gemm2.G2_LDS)]
    hdr = []
    for (n,g,b,l) in launches:
        hdr.append("; @launch kernel=%s grid=(%d,%d,%d) block=(%d,%d,%d) lds=%d" % (n,*g,*b,l))
    out = "\n".join(hdr) + "\n.amdgcn_target \"amdgcn-amd-amdhsa--gfx950\"\n.text\n" + k.text()
    out += ".section .rodata,\"a\"\n"
    for (n,v) in kernels:
        out += ".p2align 6\n" + descriptor(n, v)
    path = sys.argv[1] if len(sys.argv) > 1 else "cdna_kernels/%s.s" % NAME
    open(path, "w").write(out)
    print("wrote", path, len(out), "bytes")

if __name__ == "__main__":
    main()
```

```python
from gen import *
import os

PITCH = 192
G1_SCR = 0
TB = 9216
G1_LDS = TB + 512*PITCH
K1 = "0xc0135761"
K2 = "0xbdd2d3e8"

def f32hex(x):
    import struct
    return "0x%08x" % struct.unpack("<I", struct.pack("<f", x))[0]

STAMP1 = os.environ.get("STAMP1")
def gen_gemm1(k):
    e = k.e
    def stamp(i):
        if STAMP1:
            e("s_memtime s[%d:%d]", 64+2*i, 65+2*i)
    kernel_header(k, "gemm1a_kernel")
    e("s_mov_b32 s20, 0x%x", WS_X1T)
    e("s_branch g1_common")
    kernel_header(k, "gemm1b_kernel")
    e("s_mov_b32 s20, 0x%x", WS_X3T)
    k.lab("g1_common")
    e("s_cmp_ge_u32 s2, 224")
    e("s_cbranch_scc1 g1_done")
    stamp(0)
    e("s_load_dwordx2 s[6:7], s[0:1], 120")
    e("s_and_b32 s21, s2, 31")
    e("s_lshr_b32 s22, s2, 5")
    e("v_lshrrev_b32 v1, 3, v0")
    e("v_and_b32 v2, 7, v0")
    e("v_lshlrev_b32 v3, 12, v1")
    e("v_lshl_add_u32 v3, v2, 4, v3")
    e("s_lshl_b32 s3, s21, 7")
    e("v_add_u32 v3, s3, v3")
    e("v_and_b32 v4, 63, v0")
    e("v_lshrrev_b32 v5, 6, v0")
    e("s_lshl_b32 s3, s22, 3")
    e("v_lshl_add_u32 v6, v5, 1, s3")
    e("v_lshlrev_b32 v6, 15, v6")
    e("v_lshl_add_u32 v6, v4, 4, v6")
    e("s_waitcnt lgkmcnt(0)")
    k.srd(28, 6, 0x1E00000 if STAMP1 else WS_USED)
    e("s_add_u32 s24, s6, s20")
    e("s_addc_u32 s25, s7, 0")
    e("s_mov_b32 s26, 0x200000")
    e("s_mov_b32 s27, 0x00020000")
    for i in range(16):
        e("s_mov_b32 s40, 0x%x", i*131072)
        e("buffer_load_dwordx4 v[%d:%d], v3, s[24:27], s40 offen", 192+4*i, 195+4*i)
    e("s_mov_b32 s48, 0x%x", WS_WGP)
    e("s_mov_b32 s49, 0x%x", WS_WGP + 32768)
    e("s_mov_b32 s50, 0x%x", WS_WUP)
    e("s_mov_b32 s51, 0x%x", WS_WUP + 32768)
    def wload(stage, ft):
        b = 64 + 8*stage
        e("buffer_load_dwordx4 v[%d:%d], v6, s[28:31], s%d offen", b, b+3, 48+ft)
        e("buffer_load_dwordx4 v[%d:%d], v6, s[28:31], s%d offen", b+4, b+7, 50+ft)
        e("s_add_u32 s%d, s%d, 1024", 48+ft, 48+ft)
        e("s_add_u32 s%d, s%d, 1024", 50+ft, 50+ft)
    for st in range(8):
        wload(st, 0)
    stamp(1)
    e("s_waitcnt vmcnt(16)")
    stamp(2)
    for j in range(64):
        e("v_lshlrev_b32 v%d, 16, v%d", 128+2*j, 192+j)
        e("v_and_b32 v%d, 0xffff0000, v%d", 129+2*j, 192+j)
    for j in range(4):
        e("v_pk_add_f32 v[%d:%d], v[%d:%d], v[%d:%d]", 32+2*j, 33+2*j, 128+2*j, 129+2*j, 136+2*j, 137+2*j)
    for i in range(2,16):
        for j in range(4):
            e("v_pk_add_f32 v[%d:%d], v[%d:%d], v[%d:%d]", 32+2*j, 33+2*j, 32+2*j, 33+2*j, 128+8*i+2*j, 129+8*i+2*j)
    e("v_lshlrev_b32 v7, 5, v0")
    e("ds_write_b128 v7, v[32:35] offset:%d", G1_SCR)
    e("ds_write_b128 v7, v[36:39] offset:%d", G1_SCR+16)
    e("s_waitcnt lgkmcnt(0)")
    e("s_barrier")
    e("v_lshlrev_b32 v8, 2, v0")
    e("v_cmp_gt_u32 vcc, 64, v0")
    e("s_and_saveexec_b64 s[42:43], vcc")
    for r in range(32):
        e("ds_read_b32 v%d, v8 offset:%d", 40+r if r < 24 else 8+r, G1_SCR + 256*r)
    e("s_waitcnt lgkmcnt(0)")
    def regs32(r): return 40+r if r < 24 else 8+r
    for half in (16,8,4,2,1):
        for r in range(half):
            e("v_add_f32 v%d, v%d, v%d", regs32(r), regs32(r), regs32(r+half))
    e("v_mul_f32 v40, 0x3b000000, v40")
    e("ds_write_b32 v8, v40 offset:%d", G1_SCR + 8192)
    e("s_mov_b64 exec, s[42:43]")
    e("s_waitcnt lgkmcnt(0)")
    e("s_barrier")
    e("v_lshlrev_b32 v9, 5, v2")
    e("ds_read_b128 v[40:43], v9 offset:%d", G1_SCR + 8192)
    e("ds_read_b128 v[44:47], v9 offset:%d", G1_SCR + 8192 + 16)
    e("s_waitcnt lgkmcnt(0)")
    for j in range(4):
        e("v_mov_b32 v%d, 0", 32+2*j); e("v_mov_b32 v%d, 0", 33+2*j)
    for i in range(16):
        for j in range(4):
            e("v_pk_add_f32 v[48:49], v[%d:%d], v[%d:%d] neg_lo:[0,1] neg_hi:[0,1]", 128+8*i+2*j, 129+8*i+2*j, 40+2*j, 41+2*j)
            e("v_pk_fma_f32 v[%d:%d], v[48:49], v[48:49], v[%d:%d]", 32+2*j, 33+2*j, 32+2*j, 33+2*j)
    e("ds_write_b128 v7, v[32:35] offset:%d", G1_SCR)
    e("ds_write_b128 v7, v[36:39] offset:%d", G1_SCR+16)
    e("s_waitcnt lgkmcnt(0)")
    e("s_barrier")
    e("s_and_saveexec_b64 s[42:43], vcc")
    for r in range(32):
        e("ds_read_b32 v%d, v8 offset:%d", regs32(r), G1_SCR + 256*r)
    e("ds_read_b32 v10, v8 offset:%d", G1_SCR + 8192)
    e("s_waitcnt lgkmcnt(0)")
    for half in (16,8,4,2,1):
        for r in range(half):
            e("v_add_f32 v%d, v%d, v%d", regs32(r), regs32(r), regs32(r+half))
    e("v_mul_f32 v40, 0x3b000000, v40")
    e("v_cvt_pk_bf16_f32 v41, v10, v40")
    e("v_lshlrev_b32 v42, 16, v41")
    e("v_and_b32 v40, 0xffff0000, v41")
    e("v_add_f32 v40, 0x3727c5ac, v40")
    e("v_cvt_pk_bf16_f32 v40, v40, v40")
    e("v_lshlrev_b32 v40, 16, v40")
    e("v_sqrt_f32 v40, v40")
    e("s_nop 0")
    e("v_cvt_pk_bf16_f32 v40, v40, v40")
    e("v_lshlrev_b32 v40, 16, v40")
    e("v_rcp_f32 v43, v40")
    e("s_nop 0")
    e("ds_write_b32 v8, v42 offset:%d", G1_SCR + 8192 + 256)
    e("ds_write_b32 v8, v43 offset:%d", G1_SCR + 8192 + 512)
    e("s_mov_b64 exec, s[42:43]")
    e("s_waitcnt lgkmcnt(0)")
    e("s_barrier")
    e("ds_read_b128 v[32:35], v9 offset:%d", G1_SCR + 8192 + 256)
    e("ds_read_b128 v[36:39], v9 offset:%d", G1_SCR + 8192 + 256 + 16)
    e("ds_read_b128 v[40:43], v9 offset:%d", G1_SCR + 8192 + 512)
    e("ds_read_b128 v[44:47], v9 offset:%d", G1_SCR + 8192 + 512 + 16)
    stamp(3)
    e("v_mul_u32_u24 v10, %d, v1", PITCH)
    e("v_lshl_add_u32 v10, v2, 4, v10")
    e("v_add_u32 v10, %d, v10", TB)
    e("v_add_u32 v15, %d, v10", 8*32*PITCH)
    e("s_waitcnt lgkmcnt(0)")
    for i in range(16):
        for j in range(4):
            a = 128+8*i+2*j
            e("v_pk_add_f32 v[48:49], v[%d:%d], v[%d:%d] neg_lo:[0,1] neg_hi:[0,1]", a, a+1, 32+2*j, 33+2*j)
            e("v_cvt_pk_bf16_f32 v50, v48, v49")
            e("v_lshlrev_b32 v48, 16, v50")
            e("v_and_b32 v49, 0xffff0000, v50")
            e("v_pk_mul_f32 v[48:49], v[48:49], v[%d:%d]", 40+2*j, 41+2*j)
            e("v_cvt_pk_bf16_f32 v%d, v48, v49", 52+j)
        e("ds_write_b128 v%d, v[52:55] offset:%d", 10 if i < 8 else 15, (i%8)*32*PITCH)
        if i < 15:
            e("s_nop 0")
    for r in range(128,256):
        e("v_mov_b32 v%d, 0", r)
    e("v_lshrrev_b32 v11, 5, v4")
    e("v_lshlrev_b32 v11, 3, v11")
    e("v_bfe_u32 v12, v4, 2, 2")
    e("v_add_u32 v11, v11, v12")
    e("v_mul_u32_u24 v11, %d, v11", PITCH)
    e("v_bfe_u32 v12, v4, 4, 1")
    e("v_lshl_add_u32 v11, v12, 5, v11")
    e("v_and_b32 v12, 3, v4")
    e("v_lshl_add_u32 v11, v12, 3, v11")
    e("v_add_u32 v11, %d, v11", TB)
    e("v_add_u32 v12, %d, v11", 16*16*PITCH)
    e("s_waitcnt lgkmcnt(0)")
    e("s_barrier")
    def uread(ks):
        p = ks % 2
        base = 11 if ks < 16 else 12
        o = (ks % 16)*16*PITCH
        for tt in range(2):
            for h in range(2):
                r = 48 + 8*p + 4*tt + 2*h
                e("ds_read_b64_tr_b16 v[%d:%d], v%d offset:%d", r, r+1, base, o + h*4*PITCH + tt*64)
    stamp(4)
    e("v_and_b32 v13, 31, v4")
    e("v_lshlrev_b32 v13, 4, v13")
    e("v_lshrrev_b32 v14, 5, v4")
    e("v_lshl_add_u32 v13, v14, 3, v13")
    e("s_mul_i32 s3, s21, 224")
    e("s_lshl_b32 s4, s22, 4")
    e("s_add_u32 s3, s3, s4")
    e("v_lshlrev_b32 v14, 2, v5")
    e("v_add_u32 v14, s3, v14")
    e("v_lshl_add_u32 v13, v14, 10, v13")
    e("v_add_u32 v13, 0x%x, v13", WS_H)
    e("v_mov_b32 v16, %s", K1)
    e("s_mov_b32 s44, %s", K2)
    e("s_mov_b32 s45, 0")
    e("s_mov_b32 s46, %d", 112*1024)
    def epi(ft):
        L = []
        for tt in range(2):
            G = 128 + 16*(2*ft+tt); U = G + 64
            for a in range(4):
                for pr in range(2):
                    r0 = 4*a + 2*pr
                    L += ["v_cvt_pk_bf16_f32 v20, v%d, v%d" % (G+r0, G+r0+1),
                          "v_cvt_pk_bf16_f32 v21, v%d, v%d" % (U+r0, U+r0+1),
                          "v_lshlrev_b32 v22, 16, v20", "v_and_b32 v23, 0xffff0000, v20",
                          "v_mul_f32 v24, v22, v22", "v_mul_f32 v25, v23, v23",
                          "v_fma_f32 v24, v24, s44, v16", "v_fma_f32 v25, v25, s44, v16",
                          "v_mul_f32 v24, v24, v22", "v_mul_f32 v25, v25, v23",
                          "v_exp_f32 v24, v24", "v_exp_f32 v25, v25", "s_nop 0",
                          "v_add_f32 v24, 1.0, v24", "v_add_f32 v25, 1.0, v25",
                          "v_rcp_f32 v24, v24", "v_rcp_f32 v25, v25", "s_nop 0",
                          "v_mul_f32 v24, v24, v22", "v_mul_f32 v25, v25, v23",
                          "v_cvt_pk_bf16_f32 v24, v24, v25",
                          "v_lshlrev_b32 v22, 16, v24", "v_and_b32 v23, 0xffff0000, v24",
                          "v_lshlrev_b32 v24, 16, v21", "v_and_b32 v25, 0xffff0000, v21",
                          "v_mul_f32 v22, v22, v24", "v_mul_f32 v23, v23, v25",
                          "v_cvt_pk_bf16_f32 v%d, v22, v23" % (26+2*(a%2)+pr)]
                L.append("buffer_store_dwordx2 v[%d:%d], v13, s[28:31], s%d offen offset:%d" % (26+2*(a%2), 27+2*(a%2), 45+tt, (2*ft + a//2)*1024 + (a%2)*512))
        return L
    def mainpass(ft, fill):
        per = (len(fill) + 127)//128 if fill else 0
        uread(0)
        for ks in range(32):
            if ks < 31:
                uread(ks+1)
            st = ks % 8
            ahead = 7 if (ks < 25 or ft == 0) else 31-ks
            e("s_waitcnt vmcnt(%d) lgkmcnt(%d)", 2*ahead, 4 if ks < 31 else 0)
            p = ks % 2
            for q in range(2):
                for tt in range(2):
                    acc = 128 + 64*q + 16*(2*ft+tt)
                    w = 64 + 8*st + 4*q
                    u = 48 + 8*p + 4*tt
                    e("v_mfma_f32_32x32x16_bf16 v[%d:%d], v[%d:%d], v[%d:%d], v[%d:%d]", acc, acc+15, w, w+3, u, u+3, acc, acc+15)
                    for _ in range(per):
                        if fill: e(fill.pop(0))
            if ks + 8 < 32:
                wload(st, ft)
            elif ft == 0:
                wload(st, 1)
    mainpass(0, [])
    e("s_nop 7"); e("s_nop 7")
    f = epi(0)
    mainpass(1, f)
    for x in f: e(x)
    stamp(5)
    e("s_nop 7"); e("s_nop 7")
    for x in epi(1): e(x)
    if STAMP1:
        stamp(6)
        e("s_waitcnt lgkmcnt(0)")
        e("v_mov_b32 v20, 0x1C00000")
        e("s_lshl_b32 s3, s2, 6")
        e("v_add_u32 v20, s3, v20")
        e("v_cmp_eq_u32 vcc, 0, v0")
        e("s_and_saveexec_b64 s[42:43], vcc")
        for i in range(7):
            e("v_mov_b32 v21, s%d", 64+2*i)
            e("buffer_store_dword v21, v20, s[28:31], 0 offen offset:%d", 4*i)
    k.lab("g1_done")
    e("s_endpgm")
    return [("gemm1a_kernel", 256), ("gemm1b_kernel", 256)]
```
